```python
import torch

def _softmax(x, axis=-1):
    return torch.softmax(x, dim=axis)
def _gelu(x):
    return torch.nn.functional.gelu(x, approximate="tanh")
def _silu(x):
    return torch.nn.functional.silu(x)
def _sigmoid(x):
    return torch.sigmoid(x)
def _layernorm(x, axis=-1, eps=1e-5):
    m = x.mean(dim=axis, keepdim=True)
    v = x.var(dim=axis, keepdim=True, unbiased=False)
    return (x - m) / torch.sqrt(v + eps)
def _scatter_add(tgt, idx, src, axis=0):
    return tgt.clone().index_add_(axis, idx, src)
def _segment_sum(src, seg, n):
    out = torch.zeros((n,) + src.shape[1:], dtype=src.dtype)
    return out.index_add_(0, seg, src)
def _pad(x, pw):
    flat = tuple(v for pair in reversed(pw) for v in pair)
    return torch.nn.functional.pad(x, flat)

kernel_name = 'sequential_preLN__compressed_kv_cla__dense_activation_silu__decode'

def setup_inputs():

    _w = (lambda a: (lambda t: t.to(torch.bfloat16) if t.is_floating_point() else t)(torch.as_tensor(a)))
    def _A_setup():
        B, H, Sq, Sk, D, M = 2, 32, 1, 4096, 128, 640
        Dc = 4 * D
        return {
            "x": _w((lambda *s: torch.randn(*s, dtype=torch.bfloat16) * 0.05)(B, Sq, M)),
            "c_kv": _w((lambda *s: torch.randn(*s, dtype=torch.bfloat16) * 0.8)(B, Sk, Dc)),
            "w_q": _w((lambda *s: torch.randn(*s, dtype=torch.bfloat16) * 3.2)(M, H, D) * (M ** -0.5)),
            "w_uk": _w((lambda *s: torch.randn(*s, dtype=torch.bfloat16) * 3.2)(Dc, H, D) * (Dc ** -0.5)),
            "w_uv": _w((lambda *s: torch.randn(*s, dtype=torch.bfloat16) * 0.8)(Dc, H, D) * (Dc ** -0.5)),
            "w_o": _w((lambda *s: torch.randn(*s, dtype=torch.bfloat16) * 0.8)(H, D, M) * ((H * D) ** -0.5)),
        }
    _A_in = _A_setup()

    def _B_setup():
        B, S, D, F = 2, 1, 640, 1728
        return {
            "x": _w((lambda *s: torch.randn(*s, dtype=torch.bfloat16) * 0.05)(B, S, D)),
            "w1": _w((lambda *s: torch.randn(*s, dtype=torch.bfloat16) * 3.2)(D, F) * (D ** -0.5)),
            "w2": _w((lambda *s: torch.randn(*s, dtype=torch.bfloat16) * 0.4)(F, D) * (F ** -0.5)),
        }
    _B_in = _B_setup()

    return {
        "A_x": _A_in["x"],
        "A_c_kv": _A_in["c_kv"],
        "A_w_q": _A_in["w_q"],
        "A_w_uk": _A_in["w_uk"],
        "A_w_uv": _A_in["w_uv"],
        "A_w_o": _A_in["w_o"],
        "B_x": _B_in["x"],
        "B_w1": _B_in["w1"],
        "B_w2": _B_in["w2"],
    }

def reference(A_x, A_c_kv, A_w_q, A_w_uk, A_w_uv, A_w_o, B_x, B_w1, B_w2):
    def _A_ref(x, c_kv, w_q, w_uk, w_uv, w_o):
        B, Sq, M = x.shape[0], x.shape[1], x.shape[2]
        Sk = c_kv.shape[1]
        H, D = w_q.shape[1], w_q.shape[2]
        q = torch.einsum("bqm,mhd->bhqd", x, w_q)
        k = torch.einsum("bkc,chd->bhkd", c_kv, w_uk)
        v = torch.einsum("bkc,chd->bhkd", c_kv, w_uv)
        scores = torch.einsum("bhqd,bhkd->bhqk", q, k) * (D ** -0.5)
        off = Sk - Sq
        qi = torch.arange(Sq)[:, None]
        kj = torch.arange(Sk)[None, :]
        cmask = kj <= (qi + off)
        scores = torch.where(cmask[None, None], scores, -1e9)
        p = _softmax(scores, axis=-1)
        ctx = torch.einsum("bhqk,bhkd->bhqd", p, v)
        return torch.einsum("bhqd,hdm->bqm", ctx, w_o)

    def _B_ref(x, w1, w2):
        h = torch.einsum("bsd,df->bsf", x, w1)
        h = _silu(h)
        out = torch.einsum("bsf,fd->bsd", h, w2)
        return out

    x = A_x
    h = x + _A_ref(_layernorm(x, axis=-1), A_c_kv, A_w_q, A_w_uk, A_w_uv, A_w_o)
    h2 = h + _B_ref(_layernorm(h, axis=-1), B_w1, B_w2)
    return h2
```

```python
NAME = "sequential_preLN__compressed_kv_cla__dense_activation_silu__decode"
SZ = dict(x=2560, ckv=8388608, wq=5242880, wuk=4194304, wuv=4194304, wo=5242880, bx=2560, w1=2211840, w2=2211840, out=2560, dbg=256, ws=268435456)
OFF = dict(x=0, ckv=8, wq=16, wuk=24, wuv=32, wo=40, bx=48, w1=56, w2=64, out=72, dbg=80, ws=88)
WS_XN=0; WS_Q=0x2000; WS_QA=0x10000; WS_S=0x40000; WS_CC=0x180000; WS_CTX=0x1c0000; WS_H=0x1d0000; WS_HN=0x1d2000; WS_G=0x1d4000
def srd(reg, name):
    return f"""  s_load_dwordx2 s[{reg}:{reg+1}], s[0:1], {OFF[name]}
  s_mov_b32 s{reg+2}, {SZ[name]}
  s_mov_b32 s{reg+3}, 0x20000
"""
def kd(name, vgpr=64, sgpr=64):
    return f""".amdhsa_kernel {name}
  .amdhsa_next_free_vgpr {vgpr}
  .amdhsa_next_free_sgpr {sgpr}
  .amdhsa_accum_offset {vgpr}
  .amdhsa_group_segment_fixed_size 0
  .amdhsa_kernarg_size 96
  .amdhsa_user_sgpr_count 2
  .amdhsa_user_sgpr_kernarg_segment_ptr 1
  .amdhsa_system_sgpr_workgroup_id_x 1
.end_amdhsa_kernel
"""
def khead(name, grid):
    return f""".p2align 8
.globl {name}
.type {name},@function
{name}:
  s_cmp_ge_u32 s2, {grid}
  s_cbranch_scc1 {name}_end
  s_lshl_b32 s3, s2, 8
  v_add_u32 v1, s3, v0
"""
def kend(name):
    return f"  s_waitcnt vmcnt(0)\n{name}_end:\n  s_endpgm\n"
def gemv(name, nthreads, wname, K, addr, astride, bstride, epi, U=8):
    grid = (nthreads+255)//256
    s = khead(name, grid) + srd(8, 'ws') + srd(12, wname) + srd(16,'x') + srd(20,'out') + addr
    s += f"  v_mov_b32 v4, 0\n  s_mov_b32 s24, 0\n  s_mov_b32 s25, 0\n  s_mov_b32 s26, 0\n  s_waitcnt lgkmcnt(0)\n{name}_loop:\n"
    for u in range(U):
        s += f"  buffer_load_dword v{10+u}, v2, s[8:11], s25 offen\n  buffer_load_ushort v{30+u}, v3, s[12:15], s26 offen\n"
        s += f"  s_add_u32 s25, s25, {astride}\n  s_add_u32 s26, s26, {bstride}\n"
    s += "  s_waitcnt vmcnt(0)\n"
    for u in range(U):
        s += f"  v_lshlrev_b32 v{30+u}, 16, v{30+u}\n  v_fmac_f32 v4, v{10+u}, v{30+u}\n"
    s += f"  s_add_u32 s24, s24, {U}\n  s_cmp_lt_u32 s24, {K}\n  s_cbranch_scc1 {name}_loop\n"
    s += f"  v_cmp_gt_u32 vcc, {nthreads}, v1\n  s_and_saveexec_b64 s[30:31], vcc\n  s_cbranch_execz {name}_end\n" + epi + kend(name)
    return (name, grid, 256, 0, s)
def store_ws(base):
    return f"  v_lshlrev_b32 v5, 2, v1\n  v_add_u32 v5, {base}, v5\n  buffer_store_dword v4, v5, s[8:11], 0 offen\n"
def wave_red(op, v, t):
    s = ""
    for x in [1,2,4,8,16,32]:
        s += f"  v_xor_b32 v{t}, {x}, v0\n  v_lshlrev_b32 v{t}, 2, v{t}\n  ds_bpermute_b32 v{t}, v{t}, v{v}\n  s_waitcnt lgkmcnt(0)\n  {op} v{v}, v{v}, v{t}\n"
    return s
def ln(name, src_is_x, dst):
    s = f""".p2align 8
.globl {name}
.type {name},@function
{name}:
  s_cmp_ge_u32 s2, 2
  s_cbranch_scc1 {name}_end
""" + srd(8,'ws') + srd(16,'x') + "  s_waitcnt lgkmcnt(0)\n  s_mul_i32 s3, s2, 640\n  v_add_u32 v1, s3, v0\n"
    if src_is_x:
        s += "  v_lshlrev_b32 v2, 1, v1\n"
        for i in range(10): s += f"  buffer_load_ushort v{10+i}, v2, s[16:19], 0 offen offset:{128*i}\n"
        s += "  s_waitcnt vmcnt(0)\n"
        for i in range(10): s += f"  v_lshlrev_b32 v{10+i}, 16, v{10+i}\n"
    else:
        s += f"  v_lshlrev_b32 v2, 2, v1\n  v_add_u32 v2, {WS_H}, v2\n"
        for i in range(10): s += f"  buffer_load_dword v{10+i}, v2, s[8:11], 0 offen offset:{256*i}\n"
        s += "  s_waitcnt vmcnt(0)\n"
    s += "  v_mov_b32 v4, 0\n"
    for i in range(10): s += f"  v_add_f32 v4, v4, v{10+i}\n"
    s += wave_red("v_add_f32", 4, 5) + "  v_mul_f32 v4, 0x3acccccd, v4\n"
    s += "  v_mov_b32 v6, 0\n"
    for i in range(10): s += f"  v_sub_f32 v{10+i}, v{10+i}, v4\n  v_fmac_f32 v6, v{10+i}, v{10+i}\n"
    s += wave_red("v_add_f32", 6, 5) + "  v_mul_f32 v6, 0x3acccccd, v6\n  v_add_f32 v6, 0x3727c5ac, v6\n  v_rsq_f32 v6, v6\n  s_nop 1\n"
    s += f"  v_lshlrev_b32 v2, 2, v1\n  v_add_u32 v2, {dst}, v2\n"
    for i in range(10): s += f"  v_mul_f32 v{10+i}, v{10+i}, v6\n  buffer_store_dword v{10+i}, v2, s[8:11], 0 offen offset:{256*i}\n"
    s += kend(name)
    return (name, 2, 64, 0, s)
def softmax(name):
    s = f""".p2align 8
.globl {name}
.type {name},@function
{name}:
  s_cmp_ge_u32 s2, 64
  s_cbranch_scc1 {name}_end
""" + srd(8,'ws') + f"  s_waitcnt lgkmcnt(0)\n  s_lshl_b32 s3, s2, 14\n  s_add_u32 s3, s3, {WS_S}\n  v_lshlrev_b32 v2, 4, v0\n"
    for i in range(16): s += f"  buffer_load_dwordx4 v[{12+4*i}:{15+4*i}], v2, s[8:11], s3 offen\n  v_add_u32 v2, 1024, v2\n"
    s += "  s_waitcnt vmcnt(0)\n  v_mov_b32 v4, v12\n"
    for i in range(64): s += f"  v_max_f32 v4, v4, v{12+i}\n"
    s += wave_red("v_max_f32", 4, 5) + "  v_mov_b32 v6, 0\n"
    for i in range(64): s += f"  v_sub_f32 v{12+i}, v{12+i}, v4\n  v_mul_f32 v{12+i}, 0x3fb8aa3b, v{12+i}\n  v_exp_f32 v{12+i}, v{12+i}\n  s_nop 0\n  v_add_f32 v6, v6, v{12+i}\n"
    s += wave_red("v_add_f32", 6, 5) + "  v_rcp_f32 v6, v6\n  s_nop 1\n"
    for i in range(64): s += f"  v_mul_f32 v{12+i}, v{12+i}, v6\n"
    s += "  v_lshlrev_b32 v2, 4, v0\n"
    for i in range(16): s += f"  buffer_store_dwordx4 v[{12+4*i}:{15+4*i}], v2, s[8:11], s3 offen\n  v_add_u32 v2, 1024, v2\n"
    s += kend(name)
    return (name, 64, 64, 0, s)
def kernels():
    ks = []
    ks.append(ln("ln1_kernel", True, WS_XN))
    ks.append(gemv("q_kernel", 8192, 'wq', 640, f"  v_lshrrev_b32 v2, 12, v1\n  v_mul_u32_u24 v2, 2560, v2\n  v_add_u32 v2, {WS_XN}, v2\n  v_and_b32 v3, 4095, v1\n  v_lshlrev_b32 v3, 1, v3\n", 4, 8192, store_ws(WS_Q)))
    ks.append(gemv("qa_kernel", 32768, 'wuk', 128, f"  v_lshrrev_b32 v2, 9, v1\n  v_and_b32 v5, 31, v2\n  v_lshlrev_b32 v2, 9, v2\n  v_add_u32 v2, {WS_Q}, v2\n  v_and_b32 v3, 511, v1\n  v_lshlrev_b32 v3, 13, v3\n  v_lshlrev_b32 v5, 8, v5\n  v_add_u32 v3, v3, v5\n", 4, 2, store_ws(WS_QA)))
    ks.append(gemv("s_kernel", 262144, 'ckv', 512, f"  v_lshrrev_b32 v2, 12, v1\n  v_lshlrev_b32 v2, 11, v2\n  v_add_u32 v2, {WS_QA}, v2\n  v_lshrrev_b32 v5, 17, v1\n  v_lshlrev_b32 v5, 22, v5\n  v_and_b32 v3, 4095, v1\n  v_lshlrev_b32 v3, 10, v3\n  v_add_u32 v3, v3, v5\n", 4, 2, "  v_mul_f32 v4, 0x3db504f3, v4\n" + store_ws(WS_S)))
    ks.append(softmax("sm_kernel"))
    ks.append(gemv("cc_kernel", 32768, 'ckv', 4096, f"  v_lshrrev_b32 v2, 9, v1\n  v_lshlrev_b32 v2, 14, v2\n  v_add_u32 v2, {WS_S}, v2\n  v_lshrrev_b32 v5, 14, v1\n  v_lshlrev_b32 v5, 22, v5\n  v_and_b32 v3, 511, v1\n  v_lshlrev_b32 v3, 1, v3\n  v_add_u32 v3, v3, v5\n", 4, 1024, store_ws(WS_CC), U=16))
    ks.append(gemv("ctx_kernel", 8192, 'wuv', 512, f"  v_lshrrev_b32 v2, 7, v1\n  v_lshlrev_b32 v2, 11, v2\n  v_add_u32 v2, {WS_CC}, v2\n  v_and_b32 v3, 4095, v1\n  v_lshlrev_b32 v3, 1, v3\n", 4, 8192, store_ws(WS_CTX), U=16))
    bm = "  v_cmp_le_u32 vcc, 640, v1\n  s_nop 1\n  v_cndmask_b32 v6, 0, 1, vcc\n  v_mul_u32_u24 v7, 640, v6\n  v_sub_u32 v7, v1, v7\n"
    ks.append(gemv("h_kernel", 1280, 'wo', 4096, bm + f"  v_lshlrev_b32 v2, 14, v6\n  v_add_u32 v2, {WS_CTX}, v2\n  v_lshlrev_b32 v3, 1, v7\n", 4, 1280,
        "  v_lshlrev_b32 v5, 1, v1\n  buffer_load_ushort v8, v5, s[16:19], 0 offen\n  s_waitcnt vmcnt(0)\n  v_lshlrev_b32 v8, 16, v8\n  v_add_f32 v4, v4, v8\n" + store_ws(WS_H), U=16))
    ks.append(ln("ln2_kernel", False, WS_HN))
    bf = "  v_cmp_le_u32 vcc, 1728, v1\n  s_nop 1\n  v_cndmask_b32 v6, 0, 1, vcc\n  v_mul_u32_u24 v7, 1728, v6\n  v_sub_u32 v7, v1, v7\n"
    ks.append(gemv("g_kernel", 3456, 'w1', 640, bf + f"  v_mul_u32_u24 v2, 2560, v6\n  v_add_u32 v2, {WS_HN}, v2\n  v_lshlrev_b32 v3, 1, v7\n", 4, 3456,
        "  v_mul_f32 v8, 0xbfb8aa3b, v4\n  v_exp_f32 v8, v8\n  s_nop 0\n  v_add_f32 v8, 1.0, v8\n  v_rcp_f32 v8, v8\n  s_nop 0\n  v_mul_f32 v4, v4, v8\n" + store_ws(WS_G), U=16))
    ks.append(gemv("o_kernel", 1280, 'w2', 1728, bm + f"  v_mul_u32_u24 v2, 6912, v6\n  v_add_u32 v2, {WS_G}, v2\n  v_lshlrev_b32 v3, 1, v7\n", 4, 1280,
        f"  v_lshlrev_b32 v5, 2, v1\n  v_add_u32 v5, {WS_H}, v5\n  buffer_load_dword v8, v5, s[8:11], 0 offen\n  s_waitcnt vmcnt(0)\n  v_add_f32 v4, v4, v8\n  v_cvt_pk_bf16_f32 v4, v4, v4\n  v_lshlrev_b32 v5, 1, v1\n  buffer_store_short v4, v5, s[20:23], 0 offen\n", U=16))
    return ks
def assemble(ks, vg={}):
    s = "".join(f"; @launch kernel={n} grid=({g},1,1) block=({b},1,1) lds={l}\n" for n,g,b,l,_ in ks)
    s += '.amdgcn_target "amdgcn-amd-amdhsa--gfx950"\n.text\n'
    s += "".join(k[4] for k in ks)
    s += '.section .rodata,"a"\n'
    for k in ks: s += ".p2align 6\n" + kd(k[0], vg.get(k[0], 80), 102)
    return s
if __name__ == "__main__":
    open("simple.s","w").write(assemble(kernels()))
```

```python
from simple import *
def probe(mode, nt, amp):
    name = "probe_kernel"
    s = f""".p2align 8
.globl {name}
.type {name},@function
{name}:
  s_cmp_ge_u32 s2, 256
  s_cbranch_scc1 {name}_end
  s_memtime s[60:61]
"""
    bufs = ['wq','wuk','ckv','wuv','wo','w1','w2']
    for i,b in enumerate(bufs): s += srd(8+4*i, b)
    s += srd(40,'ws')
    s += "  v_lshlrev_b32 v1, 4, v0\n  s_waitcnt lgkmcnt(0)\n"
    if mode not in ('all0','none0'):
        s += "  s_memtime s[60:61]\n  s_waitcnt lgkmcnt(0)\n"
    r = 4; ntf = " nt" if nt else ""
    n = 0
    if mode in ('all','all0'):
        for i,b in enumerate(bufs):
            per = SZ[b]//256
            s += f"  s_mul_i32 s50, s2, {per}\n"
            for o in range(0, per, 4096):
                s += f"  buffer_load_dwordx4 v[{r}:{r+3}], v1, s[{8+4*i}:{11+4*i}], s50 offen{ntf}\n  s_add_u32 s50, s50, 4096\n"
                r += 4; n += 1
    elif mode in bufs:
        i = bufs.index(mode); per = SZ[mode]//256
        s += f"  s_mul_i32 s50, s2, {per}\n  buffer_load_dwordx4 v[4:7], v1, s[{8+4*i}:{11+4*i}], s50 offen{ntf}\n"
    elif mode.startswith('ws'):
        off = int(mode[2:])<<20
        s += f"  s_mul_i32 s50, s2, 4096\n  s_add_u32 s50, s50, {off}\n  buffer_load_dwordx4 v[4:7], v1, s[40:43], s50 offen{ntf}\n"
    elif mode.startswith('none'):
        pass
    s += f"""  s_waitcnt vmcnt(0)
  s_memtime s[62:63]
  s_waitcnt lgkmcnt(0)
  s_sub_u32 s64, s62, s60
  s_min_u32 s64, s64, 60000
  s_mul_i32 s64, s64, {amp}
{name}_spin:
  s_memtime s[66:67]
  s_waitcnt lgkmcnt(0)
  s_sub_u32 s65, s66, s62
  s_cmp_lt_u32 s65, s64
  s_cbranch_scc1 {name}_spin
{name}_end:
  s_endpgm
"""
    return (name, 256, 256, 0, s)
import sys
for tag,(mode,nt,amp) in dict(a=('all',0,0), b=('all',0,400), c=('all',1,400), d=('none0',1,400), e=('none',1,400), f=('wq',0,400)).items():
    open(f"probe_{tag}.s","w").write(assemble([probe(mode,nt,amp)]+kernels(), {"probe_kernel":160}))
```

```python
import re
class Regs:
    def __init__(self, prefix, start, limit):
        self.p, self.n, self.limit, self.hi = prefix, start, limit, start
    def alloc(self, cnt=1, align=None):
        if align is None: align = 1 if cnt == 1 else (2 if self.p != 's' else (2 if cnt == 2 else 4))
        self.n = (self.n + align - 1)//align*align
        r = R(self.p, self.n, cnt); self.n += cnt
        assert self.n <= self.limit, f"out of {self.p} regs"
        self.hi = max(self.hi, self.n)
        return r
    def mark(self): return self.n
    def release(self, m): self.n = m
class R:
    def __init__(self, p, i, cnt): self.p, self.i, self.cnt = p, i, cnt
    def __str__(self): return f"{self.p}{self.i}" if self.cnt == 1 else f"{self.p}[{self.i}:{self.i+self.cnt-1}]"
    __repr__ = __str__
    def __format__(self, spec): return str(self)
    def __getitem__(self, k):
        if isinstance(k, slice):
            a = k.start or 0; b = k.stop if k.stop is not None else self.cnt
            assert 0 <= a < b <= self.cnt, (a, b, self.cnt)
            return R(self.p, self.i + a, b - a)
        assert 0 <= k < self.cnt, (k, self.cnt)
        return R(self.p, self.i + k, 1)
    def sub(self, off, cnt): return self[off:off+cnt]

REG = re.compile(r'^-?\|?(?:abs\()?([vsa])(?:(\d+)|\[(\d+):(\d+)\])\)?\|?$')
def regs_of(op):
    op = op.strip()
    if op in ('vcc',): return ['vcc']
    if op in ('vcc_lo', 'vcc_hi'): return ['vcc']
    if op in ('exec', 'exec_lo', 'exec_hi'): return ['exec']
    if op == 'm0': return ['m0']
    m = REG.match(op)
    if not m: return []
    p = m.group(1)
    a, b = (int(m.group(2)),)*2 if m.group(2) else (int(m.group(3)), int(m.group(4)))
    return [f"{p}{i}" for i in range(a, b+1)]
TRANS = ('v_exp_', 'v_log_', 'v_rcp_', 'v_rsq_', 'v_sqrt_', 'v_sin_', 'v_cos_')
class I:
    def __init__(self, text):
        self.text = text
        t = text.split(';')[0].strip()
        self.label = t[:-1] if t.endswith(':') else None
        self.directive = t.startswith('.') and not self.label
        self.empty = (t == '')
        self.op = None
        if self.label or self.directive or self.empty: return
        parts = t.split(None, 1)
        self.op = op = parts[0]
        rest = parts[1] if len(parts) > 1 else ''
        ops = [o.strip() for o in rest.split(',')] if rest else []
        mods = ''
        if ops:
            last = ops[-1].split(None, 1)
            ops[-1] = last[0]; mods = last[1] if len(last) > 1 else ''
        self.ops, self.mods = ops, mods
        rr = [regs_of(o) for o in ops]
        self.mfma = op.startswith('v_mfma')
        self.valu = op.startswith('v_') and not self.mfma
        self.salu = op.startswith('s_')
        self.ds = op.startswith('ds_')
        self.vmem = op.startswith(('buffer_', 'global_'))
        self.dpp = self.valu and ('_dpp' in op or 'row_' in mods or 'quad_perm' in mods)
        self.trans = op.startswith(TRANS)
        self.perml = op.startswith('v_permlane')
        self.dot = op.startswith('v_dot')
        self.ldsdma = self.vmem and (re.search(r'\blds\b', mods) is not None or 'load_lds' in op)
        self.w, self.r = [], []
        flat = lambda l: [x for y in l for x in y]
        if self.mfma:
            self.w = rr[0]; self.a, self.b, self.c = rr[1], rr[2], rr[3]; self.r = self.a + self.b + self.c
            self.passes = 8 if '32x32' in op else 4
        elif self.valu:
            if self.perml: self.w = rr[0] + rr[1]; self.r = rr[0] + rr[1]
            elif op.startswith('v_nop'): pass
            else:
                self.w = list(rr[0]); self.r = flat(rr[1:])
                if re.match(r'v_(add|sub|subrev)_co|v_addc_co|v_subb', op): self.w += rr[1]
                if op.startswith(('v_fmac', 'v_dot2c', 'v_writelane', 'v_pk_fmac')) or self.dpp: self.r += rr[0]
                if op.startswith('v_cmpx'): self.w += ['exec']
        elif self.ds:
            if op.startswith(('ds_read', 'ds_bpermute', 'ds_permute', 'ds_swizzle')): self.w = rr[0]; self.r = flat(rr[1:])
            else: self.r = flat(rr)
        elif self.vmem:
            if 'load' in op and not self.ldsdma: self.w = rr[0]; self.r = flat(rr[1:])
            else: self.r = flat(rr)
            self.wide_store = ('store' in op and ('x3' in op or 'x4' in op))
            if self.wide_store: self.data = rr[0] if op.startswith('buffer') else rr[1]
        elif self.salu:
            if op.startswith(('s_cmp', 's_bitcmp', 's_cbranch', 's_branch', 's_waitcnt', 's_barrier', 's_nop', 's_sleep', 's_endpgm', 's_setprio')):
                self.r = flat(rr)
            else:
                self.w = list(rr[0]) if rr else []; self.r = flat(rr[1:])
                if 'saveexec' in op: self.w += ['exec']
        self.ws = int(ops[0]) + 1 if op == 's_nop' else 1
        self.target = ops[0] if op.startswith(('s_cbranch', 's_branch')) else None

def need(prod, cons):
    n = 0
    pw, cr, cw = set(prod.w), set(cons.r), set(cons.w)
    isv = lambda s: {x for x in s if x[0] in 'va' and x != 'vcc'}
    iss = lambda s: {x for x in s if x[0] == 's' or x == 'vcc'}
    if prod.valu:
        if isv(pw) & cr:
            if cons.mfma: n = max(n, 2)
            if cons.dpp or cons.perml: n = max(n, 2)
            if cons.op.startswith(('v_readlane', 'v_readfirstlane')): n = max(n, 1)
            if prod.trans and cons.valu and not cons.trans: n = max(n, 1)
            if prod.trans and not cons.valu: n = max(n, 1)
        if prod.dot and (isv(pw) & (cr | cw)):
            same_c = cons.op == prod.op and not (pw & set(sum([regs_of(o) for o in cons.ops[1:3]], [])))
            if not same_c: n = max(n, 3)
        if iss(pw) & cr:
            if cons.vmem: n = max(n, 5)
            if cons.valu or cons.mfma: n = max(n, 4 if cons.op.startswith(('v_readlane', 'v_writelane')) else 2)
        if 'vcc' in pw and cons.op.startswith('v_div_fmas'): n = max(n, 4)
        if 'exec' in pw:
            if cons.dpp: n = max(n, 5)
            if cons.mfma or cons.perml or cons.op.startswith(('v_readlane', 'v_readfirstlane', 'v_writelane')): n = max(n, 4)
        if 'op_sel' in prod.mods and cons.valu and (pw & (cr | cw)): n = max(n, 1)
    if prod.mfma:
        big = {4: 8, 8: 12}[prod.passes]
        if cons.mfma:
            if pw & set(cons.a + cons.b): n = max(n, big)
            if pw & set(cons.c):
                if not (cons.c == prod.w and cons.passes == prod.passes): n = max(n, big - 2)
            elif pw & cw: n = max(n, big)
        elif pw & (cr | cw): n = max(n, big)
        if cons.valu and (set(prod.c) & cw): n = max(n, prod.passes - 1)
    if prod.salu and 'm0' in pw and cons.vmem and cons.ldsdma: n = max(n, 1)
    if prod.vmem and getattr(prod, 'wide_store', False) and (set(prod.data) & cw): n = max(n, 2 if cons.valu or cons.mfma else 1)
    return n
MAXD = 14
def fix_hazards(lines, verbose=False):
    ins = [I(l) for l in lines]
    pad = [0]*len(ins)
    lab = {x.label: k for k, x in enumerate(ins) if x.label}
    for _ in range(6):
        entry = {}
        changed = False
        for rep in range(2):
            st = {}
            live = True
            for k, x in enumerate(ins):
                if x.label:
                    e = entry.get(x.label, {})
                    if not live: st = {}
                    for p, d in e.items(): st[p] = min(st.get(p, 99), d)
                    live = True
                if x.op is None: continue
                req = 0
                for p, d in st.items():
                    req = max(req, need(ins[p], x) - d)
                if req > pad[k]:
                    pad[k] = req; changed = True
                adv = pad[k] + x.ws
                st = {p: d + adv for p, d in st.items() if d + adv < MAXD}
                st[k] = 0
                if x.target in lab:
                    e = entry.setdefault(x.target, {})
                    for p, d in st.items(): e[p] = min(e.get(p, 99), d)
                if x.op in ('s_branch', 's_endpgm'): live = False
        if not changed: break
    out = []
    for k, x in enumerate(ins):
        if pad[k]:
            out.append(f"  s_nop {pad[k]-1}")
        out.append(x.text)
    return out
class Asm:
    def __init__(self): self.l = []
    def __call__(self, s):
        for ln in s.strip('\n').split('\n'):
            ln = ln.strip()
            if ln: self.l.append(ln if ln.endswith(':') or ln.startswith(('.', ';')) else '  ' + ln)
    def text(self): return '\n'.join(fix_hazards(self.l)) + '\n'
    def lines(self): return fix_hazards(self.l)

import subprocess, os, tempfile
def insn_sizes(lines):
    body = [l for l in lines if not l.lstrip().startswith(';@')]
    src = '.amdgcn_target "amdgcn-amd-amdhsa--gfx950"\n.text\n' + '\n'.join(body) + '\n'
    d = tempfile.mkdtemp()
    open(d + '/x.s', 'w').write(src)
    r = subprocess.run(['clang', '-x', 'assembler', '-target', 'amdgcn-amd-amdhsa', '-mcpu=gfx950', '-c', d + '/x.s', '-o', d + '/x.o'], capture_output=True, text=True)
    assert r.returncode == 0, r.stderr[:2000]
    out = subprocess.run(['llvm-objdump', '-d', '--mcpu=gfx950', d + '/x.o'], capture_output=True, text=True).stdout
    sz = [4*len(m.group(1).split()) for m in re.finditer(r'// [0-9A-F]{12}: ((?:[0-9A-F]{8} ?)+)', out)]
    res = []; k = 0
    for l in lines:
        x = I(l)
        if x.op is None: res.append(0)
        else: res.append(sz[k]); k += 1
    assert k == len(sz), (k, len(sz))
    return res
def add_warm_stubs(lines, gap=896):
    exp = []
    for l in lines:
        t = l.strip()
        if t.startswith(';@warm '):
            r = t.split()[1]
            exp += ['  s_mov_b64 exec, 0', f'  s_branch L_hop_{r}_0', f'L_hop_{r}_ret:', '  s_mov_b64 exec, -1']
        else: exp.append(l)
    sizes = insn_sizes([re.sub(r'L_hop_(\w+)_0$', r'L_hop_\1_ret', l) for l in exp])
    out = []; addr = 0; reg = None; last = None; n = 0; pend = []
    def hop():
        nonlocal n, last, addr
        out.append(f'L_hop_{reg}_{n}:'); out.append(f'  s_cbranch_execz L_hop_{reg}_{n+1}'); pend.append(len(out)-1)
        last = addr; addr += 4; n += 1
    for l, sz in zip(exp, sizes):
        t = l.strip()
        if t.startswith(';@begin '): reg = t.split()[1]; n = 0; last = None; continue
        if t.startswith(';@end '):
            out[pend[-1]] = f'  s_cbranch_execz L_hop_{reg}_ret'; reg = None; continue
        if reg and sz:
            isnop = t.startswith('s_nop')
            if last is None or (addr >> 12) != (last >> 12) or addr - last >= gap or (isnop and addr - last >= gap*2//3):
                hop()
                if isnop:
                    k = int(t.split()[1])
                    if k == 0: continue
                    l = f'  s_nop {k-1}'
        out.append(l); addr += sz
    return out
```

```python
import sys, struct, math
from asmlib import *
NAME = "sequential_preLN__compressed_kv_cla__dense_activation_silu__decode"
EPOCH=0; FLA=0x1000; FL2=0xC000; FLL=0x2000; FL3=0x4000; FL4=0x8000; E0L=0x10000; E0G=0x20000; E1=0x140000; PRB=0x30000; STAT=0x40000; E2BL=0x50000; E2BG=0x60000; E4=0x80000; E3=0x100000; OO=0x200000; TS=0x400000
WS_BYTES=0x500000
WQ=0; WUV=0; WUK=40960; WO=74752; XL=140288; ONES=143360; QL=143872; CC=146176; CT=148480; PB=150592; ML=151104
CK=0; QA=131072; PX=147456; MX=151552; MM=152576; W1=0; W2=20480; HB=40960; ST=43584
LDS_BYTES=153600
CAP=200000
def f32(x): return "0x%08x" % struct.unpack("<I", struct.pack("<f", x))[0]
ORD = dict(
 rot =['o0','o1','o2','o3','s0','s1','E','s2','s3'],
 rota=['o0','o1','o2','o3','s0','E','s1','s2','s3'],
 rotb=['o0','o1','o2','o3','E','s0','s1','s2','s3'],
 rotz=['o0','o1','o2','o3','s0','s1','s2','s3','E'],
 rot2=['o0','o1','s0','s1','E','o2','o3','s2','s3'],
 rot2b=['o0','o1','s0','s1','o2','o3','E','s2','s3'],
 rot2c=['o0','o1','s0','s1','o2','s2','E','o3','s3'],
 rot3=['o0','o1','o2','s0','s1','s2','E','o3','s3'],
 rot2z=['o0','o1','s0','s1','o2','o3','s2','s3','E'],
 rot3z=['o0','o1','o2','s0','s1','s2','o3','s3','E'],
 roty=['o0','o1','o2','o3','s0','s1','s2','E','s3'],
 lk1z=['a0','b0','o1','o2','o3','s1','s2','s3','E'],
 lk2z=['a0','b0','a1','b1','o2','o3','s2','s3','E'],
 lk1 =['a0','b0','o1','o2','o3','s1','E','s2','s3'],
 lk2 =['a0','b0','a1','b1','o2','o3','E','s2','s3'],
)
DEF = dict(ts=False, cap=CAP, nq=2, nu=4, order='rotz', whelp=[], d3=8, d4=0, fpre=1, du3=0, hold=2, n1=10, hf=0, hw=5, thr=4, ps=0, d1=0, d2=0, f2=26, wpos='a', P=None, nrace=3, OF=1, fap=0, dag=7, dwo=0, warm=1, lcap=48, fl4='f1', stp='early', c1=1)

def gen(opt=None):
    o = dict(DEF); o.update(opt or {})
    a = Asm()
    S = Regs('s', 52, 102)
    sWS=R('s',28,4); sRA=R('s',32,4); sRB=R('s',36,4); sRC=R('s',40,4); sRD=R('s',44,4); sRE=R('s',48,4)
    sX=S.alloc(); sI=S.alloc(); sW=S.alloc(); sE=S.alloc(); sTG=S.alloc(4); sT=S.alloc(4); sCnt=S.alloc(); sOff=S.alloc()
    sPF=S.alloc(2); sJ=S.alloc(); sP=R('s',3,1)
    NTS=12
    sTS=S.alloc(2*NTS, 2) if o['ts'] else None
    off=set()
    def stamp(k, real=False):
        if o['ts'] and k not in off: a(f"{'s_memrealtime' if real else 's_memtime'} {sTS.sub(2*k,2)}")
    def amp(role):
        if not o.get('amp') or o['amp'][0]!=role: return
        _,k,mult=o['amp']
        a(f"""s_waitcnt lgkmcnt(0)
        s_sub_u32 {sT[0]}, {sTS[2*k]}, {sTS[2]}
        s_min_u32 {sT[0]}, {sT[0]}, 100000
        s_mul_i32 {sT[0]}, {sT[0]}, {mult}
        s_memtime s[4:5]
        L_amp{role}:
        s_memtime s[6:7]
        s_waitcnt lgkmcnt(0)
        s_sub_u32 {sT[1]}, s6, s4
        s_cmp_lt_u32 {sT[1]}, {sT[0]}
        s_cbranch_scc1 L_amp{role}""")
    vCN=R('v',5,1)
    def note(k):
        if o['ts']: a(f"v_writelane_b32 {vCN}, {sCnt}, {16+k}")
    def dump_ts():
        if not o['ts'] or o.get('amp'): return
        a(f"s_memrealtime s[4:5]\ns_memtime s[6:7]\ns_mov_b64 exec, -1\ns_waitcnt lgkmcnt(0)\nv_writelane_b32 {vCN}, s4, 12\nv_writelane_b32 {vCN}, s6, 13")
        for k in range(NTS): a(f"v_writelane_b32 {vCN}, {sTS[2*k]}, {k}")
        a(f"v_lshlrev_b32 v1, 2, v0\ns_lshl_b32 {sT[0]}, s2, 10\ns_add_u32 {sT[0]}, {sT[0]}, {TS}")
        a(f"buffer_store_dword {vCN}, v1, {sWS}, {sT[0]} offen")
    def srd(r, ptr, nbytes, late):
        if late: a(f"s_mov_b64 {r[0:2]}, s[{ptr}:{ptr+1}]")
        else: a(f"s_mov_b32 {r[2]}, {nbytes}\ns_mov_b32 {r[3]}, 0x20000")
    lbl=[0]
    def poll_begin():
        lbl[0]+=1
        a(f"s_mov_b32 {sCnt}, {o['cap']}\nL_poll{lbl[0]}:")
        return f"L_poll{lbl[0]}"
    def poll_count():
        a(f"s_sub_u32 {sCnt}, {sCnt}, 1\ns_cbranch_scc1 L_end")
    def clean4(acc, d, first):
        for k in range(4): a(f"v_xor_b32 {d[k]}, {sTG[k]}, {d[k]}")
        if first: a(f"v_or3_b32 {acc}, {d[0]}, {d[1]}, {d[2]}\nv_or_b32 {acc}, {acc}, {d[3]}")
        else: a(f"v_or3_b32 {acc}, {d[0]}, {d[1]}, {acc}\nv_or3_b32 {acc}, {d[2]}, {d[3]}, {acc}")
    def poll_end(L, acc):
        a(f"v_and_b32 {acc}, 0x10001, {acc}\nv_cmp_ne_u32 vcc, 0, {acc}\ns_cbranch_vccnz {L}")
    def mk_tags(V, vL):
        vTGL=V.alloc(); vMK=V.alloc(); t=V.alloc()
        a(f"""s_add_u32 {sE}, {sE}, 1
        v_and_b32 {t}, 3, {vL}
        v_lshlrev_b32 {t}, 1, {t}
        v_lshrrev_b32 {t}, {t}, {sE}
        v_and_b32 {vTGL}, 1, {t}
        v_and_b32 {t}, 2, {t}
        v_lshl_or_b32 {vTGL}, {t}, 15, {vTGL}
        v_mov_b32 {vMK}, 0xfffefffe
        v_mov_b32 {t}, {sE}""")
        for k in range(4): a(f"v_readlane_b32 {sTG[k]}, {vTGL}, {k}")
        return vTGL, vMK, t
    def mk_sel(V, vN, t, u):
        sel=V.alloc(8,4)
        a(f"""v_bfe_u32 {t}, {vN}, 2, 1
        v_lshlrev_b32 {t}, 4, {t}
        v_mov_b32 {u}, 0x3f80
        v_lshlrev_b32 {t}, {t}, {u}
        v_and_b32 {u}, 11, {vN}""")
        for T in range(2):
            for k in range(4):
                a(f"v_cmp_eq_u32 vcc, {8*T+k}, {u}\nv_cndmask_b32 {sel[4*T+k]}, 0, {t}, vcc")
        return sel
    def flag_store(vTag, sAddr, lab):
        a(f"""s_cmp_lg_u32 {sW}, 0
        s_cbranch_scc1 {lab}
        s_mov_b64 exec, 1
        buffer_store_dword {vTag}, off, {sWS}, {sAddr} sc1
        s_mov_b64 exec, -1
        {lab}:""")
    def flag_poll(vAddr, vTmp, k):
        a(f"s_mov_b64 vcc, 0xff")
        L=poll_begin()
        a(f"s_mov_b64 exec, vcc\nbuffer_load_dword {vTmp}, {vAddr}, {sWS}, 0 offen sc1")
        poll_count()
        if o['ps']: a(f"s_sleep {o['ps']}\ns_waitcnt vmcnt(24)")
        else: a("s_waitcnt vmcnt(0)")
        a(f"v_cmp_ne_u32 vcc, {sE}, {vTmp}\ns_cbranch_vccnz {L}\ns_mov_b64 exec, -1")
        if k is not None: note(k)
    def flag_wait(vAddr, vTmp, lab, k, delay, shadow):
        a(f"v_not_b32 {vTmp}, {sE}\ns_cmp_lg_u32 {sW}, 0\ns_cbranch_scc1 {lab}_s\nbuffer_load_dword {vTmp}, {vAddr}, {sWS}, 0 offen sc1\n{lab}_s:")
        shadow()
        a(f"s_cmp_lg_u32 {sW}, 0\ns_cbranch_scc1 {lab}")
        flag_poll(vAddr, vTmp, k)
        if delay: a(f"s_sleep {delay}")
        a(f"{lab}:\ns_barrier")

    a(f"""s_cmp_ge_u32 s2, 256
    s_cbranch_scc1 L_end
    s_load_dwordx16 s[4:19], s[0:1], 0
    s_load_dwordx8 s[20:27], s[0:1], 64""")
    stamp(0, real=True); stamp(1)
    a(f"""v_lshrrev_b32 v1, 6, v0
    v_and_b32 v2, 63, v0
    v_and_b32 v3, 15, v0
    v_readfirstlane_b32 {sW}, v1
    v_bfe_u32 v4, v0, 4, 2
    s_and_b32 {sX}, s2, 7
    s_lshr_b32 {sI}, s2, 3""")
    if o['ts']: a(f"v_mov_b32 {vCN}, 0")
    def get_P_issue():
        if o['P'] is None: a(f"s_load_dword {sP}, s[24:25], 0")
    def get_P(lab):
        if o['P'] is not None:
            a(f"s_mov_b32 {sP}, {8192*o['P']}"); return
        a(f"""s_mov_b32 {sCnt}, {o['cap']}
        s_waitcnt lgkmcnt(0)
        s_cmp_lg_u32 {sP}, 0
        s_cbranch_scc1 {lab}_ok
        {lab}:
        s_load_dword {sP}, s[24:25], 0 glc
        s_sub_u32 {sCnt}, {sCnt}, 1
        s_cbranch_scc1 L_end
        s_waitcnt lgkmcnt(0)
        s_cmp_eq_u32 {sP}, 0
        s_cbranch_scc1 {lab}
        {lab}_ok:
        s_and_b32 {sP}, {sP}, 2
        s_lshl_b32 {sP}, {sP}, 12""")
    srd(sWS, 26, WS_BYTES, False)
    a(f"""s_getpc_b64 {sPF}
    L_pc:
    s_lshl_b32 {sT[0]}, {sI}, 2
    s_add_u32 {sT[0]}, {sT[0]}, {sW}
    s_mul_i32 {sT[0]}, {sT[0]}, 192
    s_min_u32 {sT[0]}, {sT[0]}, L_codeend-L_pc-132
    s_add_u32 {sPF[0]}, {sPF[0]}, {sT[0]}
    s_addc_u32 {sPF[1]}, {sPF[1]}, 0
    s_cmp_lt_u32 {sI}, 16
    s_cbranch_scc1 L_roleW""")
    splice=len(a.l)
    a("L_roleW:")
    def warm(r, w):
        if o['warm']: a(f"s_cmp_lg_u32 {sW}, {w}\ns_cbranch_scc1 L_nowarm{r}\n;@warm {r}\nL_nowarm{r}:")
    def rbegin(r):
        if o['warm']: a(f";@begin {r}")
    def rend(r):
        if o['warm']: a(f";@end {r}")
    vL=R('v',2,1); vN=R('v',3,1); vG=R('v',4,1)
    def after_kernarg():
        a(f"""s_load_dword {sE}, s[26:27], {EPOCH}
        s_load_dword {sJ}, {sPF}, 0
        s_load_dword {sJ}, {sPF}, 64
        s_load_dword {sJ}, {sPF}, 128""")

    V = Regs('v', 6, 256); A = Regs('a', 0, 256)
    sm=S.mark()
    sH=S.alloc(); sHJ=S.alloc(); sM0=S.alloc(); sHW=S.alloc()
    srd(sRA, 4, 2560, False); srd(sRB, 8, 5242880, False)
    vXo=V.alloc(); vWq=V.alloc(); vUk=V.alloc(); t0=V.alloc(); t1=V.alloc(); t2=V.alloc()
    a(f"""s_lshl_b32 {sHJ}, {sX}, 4
    s_add_u32 {sHJ}, {sHJ}, {sI}
    s_lshr_b32 {sH}, {sHJ}, 2
    s_and_b32 {sT[3]}, {sI}, 3
    v_lshlrev_b32 {vXo}, 4, v0
    s_and_b32 {sT[0]}, {sW}, 2
    s_lshl_b32 {sT[0]}, {sT[0]}, 2
    v_lshl_or_b32 {t0}, {vG}, 1, {sT[0]}
    v_xor_b32 {t0}, {t0}, {vN}
    v_lshlrev_b32 {t0}, 4, {t0}
    v_lshrrev_b32 {t1}, 4, v0
    v_lshl_or_b32 {vWq}, {t1}, 13, {t0}
    s_mul_i32 {sT[0]}, {sT[3]}, {160*8192}
    s_lshl_b32 {sT[1]}, {sH}, 8
    s_add_u32 {sT[0]}, {sT[0]}, {sT[1]}
    s_lshl_b32 {sT[1]}, {sHJ}, 9
    s_add_u32 {sT[1]}, {sT[1]}, {E0L}
    v_lshl_add_u32 {t2}, {vL}, 7, {sT[1]}
    s_lshl_b32 {sM0}, {sW}, 10
    s_add_u32 m0, {sM0}, {XL}
    s_cmp_eq_u32 {sW}, 3
    s_waitcnt lgkmcnt(0)""")
    srd(sRA,4,0,True); srd(sRB,8,0,True)
    a(f"s_cbranch_scc0 L_w_x")
    srd(sWS,26,0,True)
    a(f"""s_mov_b64 exec, 15
    buffer_load_dword {vXo}, {t2}, {sWS}, 0 offen
    s_mov_b64 exec, -1
    s_branch L_w_nox
    L_w_x:
    buffer_load_dwordx4 {vXo}, {sRA}, 0 offen lds
    L_w_nox:""")
    for v in range(10):
        a(f"s_add_u32 m0, {sM0}, {WQ+4096*v}")
        if v==0: srd(sWS,26,0,True)
        else: a(f"s_add_u32 {sT[0]}, {sT[0]}, {16*8192}")
        a(f"buffer_load_dwordx4 {vWq}, {sRB}, {sT[0]} offen lds")
    after_kernarg()
    for r,p,nb in ((sRC,10,4194304),(sRD,12,4194304),(sRE,14,5242880),(sRA,6,8388608)):
        srd(r,p,nb,False); srd(r,p,0,True)
    vSt=V.alloc(); vJ=V.alloc(); vPbw=V.alloc()
    vXa=V.alloc(); vXs=V.alloc(); vXz=V.alloc(); vTr=V.alloc(2); one=V.alloc(4,4)
    for k in range(4): a(f"v_mov_b32 {one[k]}, 0x3f803f80")
    a(f"""s_lshl_b32 {sHW}, {sX}, 2
    s_add_u32 {sHW}, {sHW}, {sW}
    v_lshrrev_b32 {t0}, 1, {vG}
    v_xor_b32 {t0}, {t0}, {vN}
    v_lshlrev_b32 {t0}, 4, {t0}
    v_lshl_or_b32 {vUk}, {vG}, 13, {t0}
    v_and_b32 {t0}, 31, v0
    s_lshl_b32 {sT[0]}, {sHJ}, 9
    s_lshl_b32 {sT[2]}, {sW}, 7
    s_add_u32 {sT[0]}, {sT[0]}, {sT[2]}
    v_lshl_add_u32 {vSt}, {t0}, 2, {sT[0]}
    v_and_b32 {vPbw}, 0x1ff, {vSt}
    v_add_u32 {vPbw}, {PB}, {vPbw}
    v_lshlrev_b32 {t1}, 4, {t0}
    v_add_u32 {t2}, {ONES}, {t1}
    ds_write_b128 {t2}, {one}
    v_bfe_u32 {t2}, v0, 5, 1
    v_mul_u32_u24 {t2}, 1280, {t2}
    v_add_u32 {vXs}, {t1}, {t2}
    v_add_u32 {vXs}, {XL}, {vXs}
    v_add_u32 {vXz}, 1024, {vXs}
    v_mov_b32 {t2}, {XL+2560}
    v_cmp_gt_u32 vcc, 16, {t0}
    v_cndmask_b32 {vXz}, {t2}, {vXz}, vcc
    v_and_b32 {t0}, 1, {vN}
    v_mul_u32_u24 {t0}, 1280, {t0}
    s_mul_i32 {sT[0]}, {sT[3]}, 320
    s_add_u32 {sT[0]}, {sT[0]}, {XL}
    v_add_u32 {t0}, {sT[0]}, {t0}
    v_mov_b32 {t2}, {ONES}
    v_and_b32 {t1}, 2, {vN}
    v_cmp_eq_u32 vcc, 0, {t1}
    v_cndmask_b32 {t0}, {t2}, {t0}, vcc
    v_lshl_add_u32 {vXa}, {vG}, 4, {t0}""")
    a(f"""v_lshrrev_b32 {t0}, 2, {vN}
    v_lshl_add_u32 {t1}, {vG}, 3, {t0}
    v_lshlrev_b32 {t1}, 8, {t1}
    v_and_b32 {t2}, 1, {vG}
    v_lshlrev_b32 {t2}, 3, {t2}
    v_lshl_or_b32 {t0}, {t0}, 1, {t2}
    v_bfe_u32 {t2}, {vN}, 1, 1
    s_lshl_b32 {sT[0]}, {sW}, 2
    v_or_b32 {t2}, {sT[0]}, {t2}
    v_xor_b32 {t0}, {t0}, {t2}
    v_lshl_or_b32 {t1}, {t0}, 4, {t1}
    v_and_b32 {t2}, 1, {vN}
    v_lshl_or_b32 {vTr[0]}, {t2}, 3, {t1}
    v_xor_b32 {vTr[1]}, 32, {vTr[0]}""")
    sel=mk_sel(V, vN, t0, t1)
    vGa=V.alloc(); vQw=V.alloc(); vQr=V.alloc(); vUr=V.alloc(); vE1=V.alloc(); vWh=V.alloc()
    a(f"""v_lshlrev_b32 {t0}, 4, {vN}
    v_lshl_or_b32 {vGa}, {vG}, 9, {t0}
    s_mul_i32 {sT[0]}, {sW}, 576
    s_add_u32 {sT[0]}, {sT[0]}, {QL}
    v_and_b32 {t0}, 1, {vG}
    v_mul_u32_u24 {t0}, 288, {t0}
    v_lshrrev_b32 {t1}, 1, {vG}
    v_lshl_or_b32 {t1}, {t1}, 4, {vN}
    v_lshl_add_u32 {t0}, {t1}, 3, {t0}
    v_add_u32 {vQw}, {sT[0]}, {t0}
    v_bfe_u32 {t0}, {vN}, 2, 1
    v_mul_u32_u24 {t0}, 288, {t0}
    v_lshl_add_u32 {t0}, {vG}, 4, {t0}
    v_add_u32 {vQr}, {sT[0]}, {t0}
    s_mul_i32 {sT[0]}, {sW}, {8*1056}
    s_add_u32 {sT[0]}, {sT[0]}, {WUK}
    v_lshrrev_b32 {t0}, 1, {vN}
    v_mul_u32_u24 {t0}, 1056, {t0}
    v_and_b32 {t1}, 1, {vN}
    v_lshl_add_u32 {t0}, {t1}, 9, {t0}
    v_xor_b32 {t1}, {t1}, {vG}
    v_lshl_add_u32 {t0}, {t1}, 4, {t0}
    v_add_u32 {vUr}, {sT[0]}, {t0}
    v_lshlrev_b32 {t0}, 2, {vN}
    v_and_b32 {t1}, 1, {vG}
    v_lshl_or_b32 {t0}, {t1}, 16, {t0}
    v_lshrrev_b32 {t2}, 1, {vG}
    v_lshl_or_b32 {t0}, {t2}, 13, {t0}
    s_and_b32 {sT[0]}, {sHW}, 24
    s_add_u32 {sT[0]}, {sT[0]}, {sHW}
    s_lshl_b32 {sT[0]}, {sT[0]}, 10
    s_lshl_b32 {sT[2]}, {sI}, 6
    s_add_u32 {sT[0]}, {sT[0]}, {sT[2]}
    s_add_u32 {sT[0]}, {sT[0]}, {E1}
    v_add_u32 {vE1}, {sT[0]}, {t0}
    v_cmp_eq_u32 s[4:5], 1, {t1}""")
    if o['whelp']:
        wh=o['whelp']; assert wh in ([3],[2,3])
        a(f"""s_lshr_b32 {sT[0]}, {sHJ}, 1
        s_lshl_b32 {sT[0]}, {sT[0]}, 17
        s_lshl_b32 {sT[1]}, {sW}, 15
        s_add_u32 {sT[0]}, {sT[0]}, {sT[1]}
        s_and_b32 {sT[1]}, {sI}, 1
        s_lshl_b32 {sT[1]}, {sT[1]}, 14
        s_add_u32 {sT[0]}, {sT[0]}, {sT[1]}
        s_add_u32 {sT[0]}, {sT[0]}, {256*wh[0]}
        v_lshlrev_b32 {t0}, 7, {vG}
        v_lshl_or_b32 {t0}, {vN}, 10, {t0}
        v_add_u32 {vWh}, {sT[0]}, {t0}""")
    a("s_waitcnt lgkmcnt(0)")
    vTGL,vMK,vE=mk_tags(V, vL)
    if o['warm']==2: warm('WF',3); rbegin('WF')
    xs=V.alloc(12,4); xa=V.alloc(20,4); s1=V.alloc(); s2=V.alloc(); mu=V.alloc(2); rs=V.alloc(2)
    a("s_waitcnt vmcnt(10)\ns_barrier")
    a(f"""ds_read_b128 {xs[0:4]}, {vXs}
    ds_read_b128 {xs[4:8]}, {vXs} offset:512
    ds_read_b128 {xs[8:12]}, {vXz}""")
    for ks in range(5): a(f"ds_read_b128 {xa.sub(4*ks,4)}, {vXa} offset:{64*ks}")
    a(f"v_mov_b32 {s1}, 0\nv_mov_b32 {s2}, 0\ns_waitcnt lgkmcnt(5)")
    for k in range(12): a(f"v_dot2c_f32_bf16 {s1}, {xs[k]}, {one[0]}\nv_dot2c_f32_bf16 {s2}, {xs[k]}, {xs[k]}")
    a(f"v_permlane16_swap_b32 {s1}, {s2}\nv_add_f32 {s1}, {s1}, {s2}")
    for r in (8,4,2,1): a(f"v_add_f32_dpp {s1}, {s1}, {s1} row_ror:{r} row_mask:0xf bank_mask:0xf")
    a(f"v_mul_f32 {s1}, {f32(1/640)}, {s1}")
    for k in range(4): a(f"v_readlane_b32 {sT[k]}, {s1}, {16*k}")
    sc = 128**-0.5*math.log2(math.e)
    for b in range(2): a(f"v_mov_b32 {mu[b]}, {sT[2*b]}")
    for b in range(2): a(f"v_fma_f32 {rs[b]}, -{mu[b]}, {mu[b]}, {sT[2*b+1]}")
    for b in range(2): a(f"v_max_f32 {rs[b]}, 0, {rs[b]}")
    for b in range(2): a(f"v_add_f32 {rs[b]}, {f32(1e-5)}, {rs[b]}")
    for b in range(2): a(f"v_rsq_f32 {rs[b]}, {rs[b]}")
    a(f"""s_lshl_b32 {sT[0]}, {sI}, 18
    s_lshl_b32 {sT[1]}, {sHW}, 8
    s_add_u32 {sT[0]}, {sT[0]}, {sT[1]}
    s_mul_i32 {sT[2]}, {sW}, {8*1056}""")
    for b in range(2): a(f"v_mul_f32 {rs[b]}, {f32(sc)}, {rs[b]}")
    sUk=R('s',8,2); hold=o['hold']
    a(f"s_mov_b32 {sUk[0]}, {sT[0]}\ns_mov_b32 {sUk[1]}, {sT[2]}")
    def uk_dma(vs):
        for v in vs:
            a(f"s_add_u32 m0, {sUk[1]}, {WUK+1056*v}")
            if v: a(f"s_add_u32 {sUk[0]}, {sUk[0]}, {4*8192}")
            a(f"buffer_load_dwordx4 {vUk}, {sRC}, {sUk[0]} offen lds")
    uk_dma(range(8-hold))
    stamp(2)
    fq=A.alloc(40,4); D=V.alloc(8,4)
    def w0_reads(ks):
        for t in range(2):
            for e in range(2): a(f"ds_read_b64_tr_b16 {fq.sub(8*ks+4*t+2*e,2)}, {vTr[t]} offset:{WQ+8192*ks+1024*e}")
    def w0_mm(ks):
        for t in range(2): a(f"v_mfma_f32_16x16x32_bf16 {D.sub(4*t,4)}, {xa.sub(4*ks,4)}, {fq.sub(8*ks+4*t,4)}, {D.sub(4*t,4) if ks else 0}")
    a(f"s_waitcnt vmcnt({12-hold})\ns_barrier")
    for ks in range(3): w0_reads(ks)
    a(f"s_waitcnt vmcnt({8-hold})\ns_barrier")
    stamp(3)
    for ks in (3,4): w0_reads(ks)
    a("s_waitcnt lgkmcnt(8)")
    for ks in range(3): w0_mm(ks)
    a("s_waitcnt lgkmcnt(4)"); w0_mm(3)
    a("s_waitcnt lgkmcnt(0)"); w0_mm(4)
    sBL=R('s',6,1); sBG=R('s',7,1); sPG=R('s',12,1)
    def gather_prep(offL, offG, ex=True):
        a(f"""s_lshl_b32 {sBL}, {sHW}, 11
        s_add_u32 {sBG}, {sBL}, {offG}
        s_add_u32 {sBL}, {sBL}, {offL}
        s_mov_b32 {sOff}, {sBL}
        s_mov_b32 {sT[0]}, {offL}
        s_mov_b32 {sPG}, {offG}""")
        if ex: a("s_bfm_b64 exec, 32, 0")
    gather_prep(E0L, E0G)
    for k in range(3): a(f"v_cndmask_b32 {D[k]}, {D[k]}, {D[4+k]}, s[4:5]")
    for b in range(2): a(f"v_fma_f32 {D[b]}, -{mu[b]}, {D[2]}, {D[b]}")
    for b in range(2): a(f"v_mul_f32 {D[b]}, {D[b]}, {rs[b]}")
    vPub=V.alloc()
    def publish_local(val0, val1):
        a(f"""v_cvt_pk_bf16_f32 {vPub}, {val0}, {val1}
        v_and_or_b32 {vPub}, {vPub}, {vMK}, {vTGL}
        buffer_store_dword {vPub}, {vSt}, {sWS}, {sT[0]} offen
        ds_write_b32 {vPbw}, {vPub}
        s_mov_b64 exec, -1""")
    def publish_global():
        a(f"""s_bfm_b64 exec, 32, 0
        buffer_store_dword {vPub}, {vSt}, {sWS}, {sPG} offen sc1
        s_mov_b64 exec, -1""")
    publish_local(D[0], D[1])
    uk_dma(range(8-hold,8))
    stamp(4)
    pl=V.alloc(16,4); acc=V.alloc(); Dq=V.alloc(4,4); qa=V.alloc(16,4); fu=A.alloc(32,4)
    def gather2(k, mid=None, pre=None):
        lbl[0]+=1; L=f"L_poll{lbl[0]}"
        def loads():
            a(f"""buffer_load_dwordx4 {pl[0:4]}, {vGa}, {sWS}, {sOff} offen sc1
            buffer_load_dwordx4 {pl[4:8]}, {vGa}, {sWS}, {sOff} offen offset:256 sc1""")
        loads()
        a(f"s_mov_b32 {sCnt}, {o['cap']}\ns_waitcnt {'vmcnt(3) ' if pre else ''}lgkmcnt(0)\ns_barrier")
        if pre: pre()
        a(f"s_branch {L}_in\n{L}:")
        a(f"""s_cmp_lg_u32 {sOff}, {sBG}
        s_cbranch_scc1 {L}_l
        v_lshlrev_b32 {t0}, 3, {vL}
        v_add_u32 {t1}, {PB}, {t0}
        ds_read_b64 {pl[8:10]}, {t1}
        s_lshl_b32 {sT[0]}, {sHJ}, 9
        s_add_u32 {sT[0]}, {sT[0]}, {sPG}
        s_waitcnt lgkmcnt(0)
        buffer_store_dwordx2 {pl[8:10]}, {t0}, {sWS}, {sT[0]} offen sc1
        {L}_l:""")
        loads()
        a(f"{L}_in:")
        poll_count()
        a(f"s_and_b32 {sT[0]}, {sCnt}, 15\ns_cselect_b32 {sOff}, {sBL}, {sBG}")
        if mid: mid()
        a("s_waitcnt vmcnt(1)")
        clean4(acc, pl[0:4], True)
        a(f"v_mfma_f32_16x16x32_bf16 {Dq}, {sel[0:4]}, {pl[0:4]}, 0")
        a("s_waitcnt vmcnt(0)")
        clean4(acc, pl[4:8], False)
        a(f"v_mfma_f32_16x16x32_bf16 {Dq}, {sel[4:8]}, {pl[4:8]}, {Dq}")
        poll_end(L, acc)
        note(k)
    def mid_uk():
        a(f"s_waitcnt vmcnt({2 if hold else 3})")
        if o['ts']:
            a(f"s_cmp_lg_u32 {sCnt}, {o['cap']-1}\ns_cbranch_scc1 L_nost2"); stamp(2); a("L_nost2:")
        for t in range(2):
            for s in range(4): a(f"ds_read_b128 {fu.sub(16*t+4*s,4)}, {vUr} offset:{256*t+64*s}")
    gather2(0, mid_uk)
    stamp(5)
    a(f"""v_cvt_pk_bf16_f32 {Dq[0]}, {Dq[0]}, {Dq[1]}
    v_cvt_pk_bf16_f32 {Dq[1]}, {Dq[2]}, {Dq[3]}
    ds_write_b64 {vQw}, {Dq[0:2]}""")
    for s in range(4): a(f"ds_read_b128 {qa.sub(4*s,4)}, {vQr} offset:{64*s}")
    for s in range(4):
        a(f"s_waitcnt lgkmcnt({3-s})")
        for t in range(2):
            a(f"v_mfma_f32_16x16x32_bf16 {D.sub(4*t,4)}, {qa.sub(4*s,4)}, {fu.sub(16*t+4*s,4)}, {D.sub(4*t,4) if s else 0}")
    a("s_barrier")
    a(f"""s_and_b32 {sT[3]}, {sI}, 3
    s_lshl_b32 {sT[0]}, {sH}, 8
    s_lshl_b32 {sT[2]}, {sT[3]}, 18
    s_add_u32 {sT[0]}, {sT[0]}, {sT[2]}
    v_cvt_pk_bf16_f32 {t0}, {D[0]}, {D[4]}
    v_and_or_b32 {t0}, {t0}, {vMK}, {vTGL}
    buffer_store_dword {t0}, {vE1}, {sWS}, 0 offen sc1
    s_bfm_b64 exec, 32, 0
    buffer_store_dword {vPub}, {vSt}, {sWS}, {sPG} offen sc1
    s_mov_b64 exec, -1""")
    stamp(6)
    if o['warm']==2: rend('WF')
    if o['du3']: a(f"s_sleep {o['du3']}")
    get_P_issue()
    assert FLL==FLA+4096
    if o['whelp']==[2,3]: a(f"buffer_load_dword {vJ}, {vWh}, {sRA}, 0 offen")
    if o['whelp']==[3]: a(f"s_bfm_b64 exec, 32, 0\nbuffer_load_dword {vJ}, {vWh}, {sRA}, 0 offen\ns_mov_b64 exec, -1")
    if o['hw']:
        per=o['hw']*16; ni=-(-per//64); cnt=-(-per//ni)
        a(f"""s_sub_u32 {sT[1]}, {sI}, 10
        s_cmp_ge_u32 {sT[1]}, 5
        s_cbranch_scc1 L_w_nohw
        s_lshl_b32 {sT[1]}, {sT[1]}, 2
        s_add_u32 {sT[1]}, {sT[1]}, {sW}
        s_mul_i32 {sT[1]}, {sT[1]}, {cnt*ni*128}
        s_mul_i32 {sT[2]}, {sX}, {512*1280}
        s_add_u32 {sT[1]}, {sT[1]}, {sT[2]}
        s_add_u32 {sT[1]}, {sT[1]}, {(o['n1']-o['hw'])*32*1280}
        v_lshlrev_b32 {t0}, 7, {vL}""")
        if cnt<64: a(f"s_bfm_b64 exec, {cnt}, 0")
        for q in range(ni):
            if q: a(f"s_add_u32 {sT[1]}, {sT[1]}, {cnt*128}")
            a(f"buffer_load_dword {vJ}, {t0}, {sRE}, {sT[1]} offen")
        a("s_mov_b64 exec, -1\nL_w_nohw:")
    for v in range(8):
        a(f"s_add_u32 m0, {sM0}, {WUV+4096*v}")
        if v: a(f"s_add_u32 {sT[0]}, {sT[0]}, {(16 if v&1 else 112)*8192}")
        a(f"buffer_load_dwordx4 {vWq}, {sRD}, {sT[0]} offen lds")
    vWo=V.alloc(); vOr=V.alloc()
    get_P("L_w_P")
    vF2=V.alloc(); vFv=V.alloc(); sSd=R('s',20,1)
    a(f"""s_lshr_b32 {sSd}, {sX}, 2
    s_lshl_b32 {sSd}, {sSd}, 13
    s_xor_b32 {sSd}, {sSd}, {sP}
    s_lshl_b32 {sT[1]}, {sX}, 10
    s_add_u32 {sT[1]}, {sT[1]}, {sSd}
    s_add_u32 {sT[1]}, {sT[1]}, {FL2}
    v_lshl_add_u32 {vF2}, {vL}, 7, {sT[1]}
    s_lshl_b32 {sT[1]}, {sX}, 7
    s_add_u32 {sT[1]}, {sT[1]}, {FLA}
    v_and_b32 {t0}, 1, {vL}
    v_lshl_add_u32 {t0}, {t0}, 12, {sT[1]}
    v_cmp_gt_u32 vcc, 8, {vL}
    v_cndmask_b32 {vF2}, {t0}, {vF2}, vcc
    s_mov_b64 exec, 0x3ff
    buffer_load_dword {vFv}, {vF2}, {sWS}, 0 offen sc1
    s_mov_b64 exec, -1""")
    a(f"""s_mov_b32 {sOff}, {E2BL}
    s_mov_b64 exec, 1
    buffer_load_dword {vJ}, {vSt}, {sWS}, {sOff} offen
    s_mov_b64 exec, -1
    v_lshrrev_b32 {t0}, 3, v0
    v_mul_u32_u24 {t0}, 1280, {t0}
    v_bfe_u32 {t1}, v0, 4, 1
    s_and_b32 {sT[0]}, {sW}, 1
    s_lshl_b32 {sT[0]}, {sT[0]}, 2
    v_lshl_or_b32 {t1}, {t1}, 1, {sT[0]}
    v_and_b32 {t2}, 7, v0
    v_xor_b32 {t1}, {t1}, {t2}
    v_lshl_add_u32 {vWo}, {t1}, 4, {t0}
    s_mul_i32 {sT[0]}, {sX}, {512*1280}
    s_lshl_b32 {sT[1]}, {sI}, 7
    s_add_u32 {sT[0]}, {sT[0]}, {sT[1]}""")
    n1=o['n1']; sWo=R('s',16,1)
    a(f"s_mov_b32 {sWo}, {sT[0]}\ns_cmp_ge_u32 {sI}, 10\ns_cbranch_scc1 L_w_nowo")
    def wo_dma(vs):
        if o.get('nowo'): return
        for v in vs:
            a(f"s_add_u32 m0, {sM0}, {WO+4096*v}")
            if v: a(f"s_add_u32 {sWo}, {sWo}, {32*1280}")
            a(f"buffer_load_dwordx4 {vWo}, {sRE}, {sWo} offen lds")
    wo_dma(range(n1))
    if o['hf']:
        a("s_branch L_w_wo2")
    a("L_w_nowo:")
    if o['hf']:
        srd(sRB,18,2211840,False); srd(sRB,18,0,True)
        a(f"""s_lshl_b32 {sT[0]}, {sW}, 3
        s_add_u32 {sT[0]}, {sT[0]}, {sX}
        s_cmp_ge_u32 {sT[0]}, 27
        s_cbranch_scc1 L_w_wo2
        s_lshl_b32 {sT[0]}, {sT[0]}, 7
        s_sub_u32 {sT[1]}, {sI}, 6
        s_mul_i32 {sT[1]}, {sT[1]}, {64*3456}
        s_add_u32 {sT[0]}, {sT[0]}, {sT[1]}
        v_mul_u32_u24 {t0}, 3456, {vL}
        buffer_load_dword {vJ}, {t0}, {sRB}, {sT[0]} offen""")
        if o['hf']==2:
            a(f"""s_cmp_lt_u32 {sI}, 12
            s_cbranch_scc1 L_w_wo2
            s_sub_u32 {sT[0]}, {sT[0]}, {384*3456}
            buffer_load_dword {vJ}, {t0}, {sRB}, {sT[0]} offen""")
        a("L_w_wo2:")
    vSa=V.alloc(); vFa=V.alloc(); vOa=V.alloc(); vMl=V.alloc(); vMr=V.alloc(); mk=V.alloc(8,4); vCw=V.alloc(); vCr=V.alloc(); vTw=V.alloc(); vTrr=V.alloc(); vE3=V.alloc(); Do=V.alloc(4,4)
    sF3=R('s',13,1)
    a(f"""v_lshrrev_b32 {t0}, 2, {vN}
    v_lshl_add_u32 {t1}, {vG}, 3, {t0}
    v_lshlrev_b32 {t1}, 7, {t1}
    v_and_b32 {t0}, 2, {t0}
    v_and_b32 {t2}, 1, {vG}
    v_lshl_or_b32 {t0}, {t2}, 2, {t0}
    v_bfe_u32 {t2}, {vN}, 1, 1
    s_lshl_b32 {sT[0]}, {sW}, 1
    v_or_b32 {t2}, {sT[0]}, {t2}
    v_xor_b32 {t0}, {t0}, {t2}
    v_lshl_or_b32 {t1}, {t0}, 4, {t1}
    v_and_b32 {t2}, 1, {vN}
    v_lshl_or_b32 {t1}, {t2}, 3, {t1}
    v_add_u32 {vOr}, {WO}, {t1}
    s_and_b32 {sT[0]}, {sX}, 3
    s_lshl_b32 {sT[0]}, {sT[0]}, 7
    s_add_u32 {sT[0]}, {sT[0]}, {sSd}
    s_and_b32 {sT[1]}, {sH}, 3
    s_lshl_b32 {sT[1]}, {sT[1]}, 4
    s_add_u32 {sT[0]}, {sT[0]}, {sT[1]}
    s_add_u32 {sT[0]}, {sT[0]}, {STAT}
    s_and_b32 {sT[1]}, {sW}, 2
    s_add_u32 {sT[1]}, {sT[1]}, {sW}
    s_lshl_b32 {sT[1]}, {sT[1]}, 12
    s_add_u32 {sT[0]}, {sT[0]}, {sT[1]}
    v_lshrrev_b32 {t0}, 3, {vN}
    v_and_b32 {t1}, 4, {vN}
    v_cmp_eq_u32 s[18:19], 0, {t1}
    v_lshl_or_b32 {t1}, {t0}, 6, {t1}
    v_or_b32 {t1}, {t1}, {vG}
    v_lshl_add_u32 {vSa}, {t1}, 9, {sT[0]}
    v_lshlrev_b32 {vMr}, 5, {t0}
    v_add_u32 {vMr}, {ML}, {vMr}
    s_lshl_b32 {sT[1]}, {sW}, 3
    v_add_u32 {vMl}, {sT[1]}, {vMr}
    s_lshr_b32 {sT[0]}, {sH}, 4
    s_lshl_b32 {sF3}, {sX}, 7
    s_add_u32 {sF3}, {sF3}, {FLL}
    v_lshl_add_u32 {vFa}, {vN}, 2, {sF3}
    s_lshl_b32 {sT[1]}, {sI}, 2
    s_add_u32 {sF3}, {sF3}, {sT[1]}
    s_xor_b32 {sT[0]}, {sSd}, {8192*o['OF']}
    s_and_b32 {sT[1]}, {sT[3]}, 2
    s_add_u32 {sT[1]}, {sT[1]}, {sT[3]}
    s_lshl_b32 {sT[1]}, {sT[1]}, 12
    s_add_u32 {sT[0]}, {sT[0]}, {sT[1]}
    s_and_b32 {sT[1]}, {sH}, 3
    s_lshl_b32 {sT[1]}, {sT[1]}, 10
    s_add_u32 {sT[0]}, {sT[0]}, {sT[1]}
    s_bfe_u32 {sT[1]}, {sH}, 0x20002
    s_lshl_b32 {sT[1]}, {sT[1]}, 8
    s_add_u32 {sT[0]}, {sT[0]}, {sT[1]}
    s_lshl_b32 {sT[1]}, {sW}, 18
    s_add_u32 {sT[0]}, {sT[0]}, {sT[1]}
    s_add_u32 {sT[0]}, {sT[0]}, {OO}
    v_lshlrev_b32 {t0}, 4, {vN}
    v_lshl_or_b32 {t0}, {vG}, 15, {t0}
    v_add_u32 {vOa}, {sT[0]}, {t0}
    v_lshrrev_b32 {t0}, 3, {vN}
    v_and_b32 {t1}, 1, {vN}
    v_lshlrev_b32 {t1}, 4, {t1}
    v_mov_b32 {t2}, 0xffff
    v_lshlrev_b32 {t1}, {t1}, {t2}
    v_lshrrev_b32 {t2}, 1, {vN}""")
    for k in range(8): a(f"v_cmp_eq_u32 vcc, {k}, {t2}\nv_cndmask_b32 {mk[k]}, 0, {t1}, vcc")
    a(f"""s_mul_i32 {sT[0]}, {sW}, 576
    s_add_u32 {sT[0]}, {sT[0]}, {CC}
    v_mul_u32_u24 {t0}, 288, {t0}
    v_and_b32 {t1}, 7, {vN}
    v_lshl_add_u32 {t0}, {t1}, 5, {t0}
    v_lshl_add_u32 {t0}, {vG}, 3, {t0}
    v_add_u32 {vCw}, {sT[0]}, {t0}
    v_mul_u32_u24 {t0}, 288, {t1}
    v_lshl_add_u32 {t0}, {vG}, 4, {t0}
    v_add_u32 {vCr}, {CC}, {t0}
    v_and_b32 {t0}, 1, {vG}
    v_mul_u32_u24 {t0}, 1056, {t0}
    v_lshrrev_b32 {t1}, 1, {vG}
    v_lshl_or_b32 {t1}, {t1}, 4, {vN}
    v_lshl_add_u32 {t0}, {t1}, 3, {t0}
    s_lshl_b32 {sT[0]}, {sW}, 8
    s_add_u32 {sT[0]}, {sT[0]}, {CT}
    v_add_u32 {vTw}, {sT[0]}, {t0}
    v_and_b32 {t0}, 1, {vN}
    v_mul_u32_u24 {t0}, 1056, {t0}
    v_lshl_add_u32 {t0}, {vG}, 4, {t0}
    v_add_u32 {vTrr}, {CT}, {t0}
    s_lshl_b32 {sT[0]}, {sI}, 6
    s_lshl_b32 {sT[1]}, {sW}, 4
    s_add_u32 {sT[0]}, {sT[0]}, {sT[1]}
    v_add_u32 {t0}, {sT[0]}, {vN}
    s_and_b32 {sT[1]}, {sX}, 6
    s_add_u32 {sT[1]}, {sT[1]}, {sX}
    s_lshl_b32 {sT[1]}, {sT[1]}, 12
    s_add_u32 {sT[1]}, {sT[1]}, {E3}
    v_lshl_add_u32 {vE3}, {t0}, 2, {sT[1]}
    v_lshl_add_u32 {vE3}, {vG}, 16, {vE3}
    v_lshlrev_b32 {t0}, 1, {t0}
    v_add_u32 {t0}, {XL}, {t0}
    ds_read_u16 {Do[0]}, {t0}
    ds_read_u16 {Do[1]}, {t0} offset:1280
    s_cmp_eq_u32 {sX}, 0
    s_cselect_b32 {sT[0]}, -1, 0
    v_mov_b32 {Do[2]}, 0
    v_mov_b32 {Do[3]}, 0
    s_waitcnt lgkmcnt(0)""")
    for b in range(2): a(f"v_lshlrev_b32 {Do[b]}, 16, {Do[b]}\nv_and_b32 {Do[b]}, {sT[0]}, {Do[b]}")
    fv=A.alloc(32,4); fo=A.alloc(64,4)
    st=V.alloc(4,4); bq=V.alloc(16,4); al=V.alloc(2); ml=V.alloc(2,2); fac=V.alloc(4)
    sO=R('s',8,4)
    for ii in range(4): a(f"s_mov_b32 {sO[ii]}, {(ii>>1)*(1<<20) + (ii&1)*(4<<15)}")
    warm('WB',3); rbegin('WB')
    a("s_waitcnt vmcnt(0)\ns_barrier")
    stamp(7)
    def fv_reads():
        for ks in range(4):
            for t in range(2):
                for e in range(2): a(f"ds_read_b64_tr_b16 {fv.sub(8*ks+4*t+2*e,2)}, {vTr[t]} offset:{WUV+8192*ks+1024*e}")
    def fo_reads(kss):
        for ks in kss:
            for e in range(2): a(f"ds_read_b64_tr_b16 {fo.sub(4*ks+2*e,2)}, {vOr} offset:{4096*ks+512*e}")
    sPd=R('s',17,1); vFs=fac[2]
    ld=lambda ii: f"buffer_load_dwordx4 {pl.sub(4*ii,4)}, {vOa}, {sWS}, {sO[ii]} offen sc1"
    ldst=f"buffer_load_dwordx4 {st}, {vSa}, {sWS}, 0 offen sc1"
    a(f"""s_lshl_b32 {sT[0]}, {sX}, 7
    s_add_u32 {sT[0]}, {sT[0]}, {FL2}
    v_lshl_add_u32 {vFs}, {vL}, 10, {sT[0]}
    s_add_u32 {sT[0]}, {sI}, {sW}
    s_cmp_lg_u32 {sT[0]}, 18
    s_cbranch_scc1 L_w_ld
    s_mov_b32 {sT[2]}, {FLA-FLL}
    s_mov_b32 {sCnt}, {o['lcap']}
    v_add_u32 {t2}, {sT[2]}, {vFa}
    L_w_la:
    buffer_load_dword {vJ}, {t2}, {sWS}, 0 offen sc1
    s_sub_u32 {sCnt}, {sCnt}, 1
    s_cbranch_scc1 L_w_lb
    s_waitcnt vmcnt(0)
    v_cmp_ne_u32 vcc, {sE}, {vJ}
    s_cbranch_vccnz L_w_la
    L_w_lb:
    s_mov_b64 exec, 0xffff
    {'s_sleep %d'%o['dag'] if o['dag'] else ''}
    buffer_store_dword {vE}, {vFs}, {sWS}, 0 offen sc1""")
    a(f"L_w_ld:")
    if o.get('dbg2'): stamp(4)
    a(f"s_cmp_lg_u32 {sW}, 0\ns_cbranch_scc1 L_w_le")
    flag_poll(vF2, vFv, 1)
    if o.get('d1'):
        if o['c1']: a(f"s_cmp_eq_u32 {sCnt}, {o['cap']-1}\ns_cbranch_scc1 L_w_le")
        a(f"s_sleep {o['d1']}")
    a(f"L_w_le:\ns_mov_b64 exec, -1\ns_barrier\n{ldst}")
    fv_reads(); fo_reads(range(n1))
    if o['d2']: a(f"s_sleep {o['d2']}")
    for ii in range(4): a(ld(ii))
    stamp(8)
    if o['wpos']=='a':
        a(f"s_cmp_ge_u32 {sI}, 10\ns_cbranch_scc1 L_w_e2a")
        wo_dma(range(n1,16))
        a(f"s_waitcnt vmcnt({20-n1})\ns_branch L_w_e2b\nL_w_e2a:\ns_waitcnt vmcnt(4)\nL_w_e2b:")
    else: a("s_waitcnt vmcnt(4)")
    a(f"""    s_mov_b32 {sCnt}, {o['cap']}
    v_cmp_ne_u32 vcc, {sE}, {st[3]}
    s_cbranch_vccz L_w_e2v
    L_w_e2r:
    {ldst}""")
    poll_count()
    a(f"""s_waitcnt vmcnt(0)
    v_cmp_ne_u32 vcc, {sE}, {st[3]}
    s_cbranch_vccnz L_w_e2r
    L_w_e2v:""")
    if o.get('dbg2'): stamp(5); note(0)
    hm="row_half_mirror row_mask:0xf bank_mask:0xf"
    a(f"""v_max_i32_dpp {t0}, {st[2]}, {st[2]} {hm}
    v_max_i32_dpp {t1}, {st[2]}, {st[2]} {hm}
    v_permlane16_swap_b32 {t0}, {t1}
    v_max_i32 {t2}, {t0}, {t1}
    v_max_i32 {t1}, {t0}, {t1}
    v_permlane32_swap_b32 {t2}, {t1}
    v_max_i32 {ml[0]}, {t2}, {t1}
    v_sub_u32 {t0}, {st[2]}, {ml[0]}
    v_ldexp_f32 {t0}, {st[1]}, {t0}
    v_add_f32_dpp {t1}, {t0}, {t0} {hm}
    v_add_f32_dpp {t2}, {t0}, {t0} {hm}
    v_permlane16_swap_b32 {t1}, {t2}
    v_add_f32 {t0}, {t1}, {t2}
    v_add_f32 {t2}, {t1}, {t2}
    v_permlane32_swap_b32 {t0}, {t2}
    v_add_f32 {ml[1]}, {t0}, {t2}
    ds_write_b64 {vMl}, {ml}
    s_waitcnt lgkmcnt(0)
    s_barrier
    ds_read_b128 {bq[0:4]}, {vMr}
    ds_read_b128 {bq[4:8]}, {vMr} offset:16""")
    gather_prep(E2BL, E2BG, False)
    a(f"""s_waitcnt lgkmcnt(0)
    v_max3_i32 {t0}, {bq[0]}, {bq[2]}, {bq[4]}
    v_max_i32 {t0}, {t0}, {bq[6]}""")
    for k in range(4): a(f"v_sub_u32 {bq[2*k]}, {bq[2*k]}, {t0}")
    for k in range(4): a(f"v_ldexp_f32 {bq[2*k+1]}, {bq[2*k+1]}, {bq[2*k]}")
    a(f"""v_add_f32 {bq[1]}, {bq[1]}, {bq[3]}
    v_add_f32 {bq[5]}, {bq[5]}, {bq[7]}
    v_add_f32 {bq[1]}, {bq[1]}, {bq[5]}
    v_rcp_f32 {fac[0]}, {bq[1]}
    v_sub_u32 {t0}, {st[2]}, {t0}
    v_add_u32 {t2}, 0x7f, {t0}
    v_max_i32 {t2}, 0, {t2}
    v_mul_u32_u24 {t2}, 0x800080, {t2}
    v_readlane_b32 s14, {fac[0]}, 0
    v_readlane_b32 s15, {fac[0]}, 8
    v_mov_b32_dpp {t1}, {t2} {hm}
    v_cndmask_b32 {al[0]}, {t1}, {t2}, s[18:19]
    v_cndmask_b32 {al[1]}, {t2}, {t1}, s[18:19]""")
    for ii in range(4):
        for k in range(4): a(f"v_and_b32 {bq[4*ii+k]}, {mk[4*(ii>>1)+k]}, {al[ii&1]}")
    lbl[0]+=1; L=f"L_poll{lbl[0]}"
    a(f"s_mov_b32 {sCnt}, {o['cap']-1}\ns_cmp_ge_u32 {sI}, 10\ns_cbranch_scc1 {L}_in")
    if o['wpos']=='b': wo_dma(range(n1,16))
    a(f"s_waitcnt vmcnt({16-n1})\ns_branch {L}_go\n{L}:")
    for ii in range(4): a(ld(ii))
    poll_count()
    a(f"{L}_in:\ns_waitcnt vmcnt(0)\n{L}_go:")
    for ii in range(4):
        d=pl.sub(4*ii,4)
        for k in range(4): a(f"v_xor_b32 {d[k]}, {sTG[k]}, {d[k]}")
        if ii: a(f"v_mfma_f32_16x16x32_bf16 {Dq}, {pl.sub(4*ii-4,4)}, {bq.sub(4*ii-4,4)}, {Dq if ii>1 else 0}")
    a(f"v_or3_b32 {acc}, {pl[0]}, {pl[1]}, {pl[2]}")
    a(f"v_mfma_f32_16x16x32_bf16 {Dq}, {pl[12:16]}, {bq[12:16]}, {Dq}")
    for k in range(3,15,2): a(f"v_or3_b32 {acc}, {acc}, {pl[k]}, {pl[k+1]}")
    a(f"""v_or_b32 {acc}, {acc}, {pl[15]}
    v_and_b32 {acc}, 0x10001, {acc}
    v_cmp_ne_u32 vcc, 0, {acc}
    v_cvt_pk_bf16_f32 {Dq[0]}, {Dq[0]}, {Dq[1]}
    v_cvt_pk_bf16_f32 {Dq[1]}, {Dq[2]}, {Dq[3]}
    ds_write_b64 {vCw}, {Dq[0:2]}
    s_cbranch_vccnz {L}""")
    stamp(9)
    a("s_waitcnt lgkmcnt(0)\ns_barrier")
    for s in range(4): a(f"ds_read_b128 {qa.sub(4*s,4)}, {vCr} offset:{64*s}")
    a(f"""s_cmp_lg_u32 {sW}, 0
    s_cbranch_scc1 L_w_fl
    s_mov_b64 exec, 1
    buffer_store_dword {vE}, off, {sWS}, {sF3}
    s_mov_b64 exec, -1
    L_w_fl:""")
    for s in range(4):
        a(f"s_waitcnt lgkmcnt({3-s})")
        for t in range(2):
            a(f"v_mfma_f32_16x16x32_bf16 {D.sub(4*t,4)}, {qa.sub(4*s,4)}, {fv.sub(8*s+4*t,4)}, {D.sub(4*t,4) if s else 0}")
    a("s_bfm_b64 exec, 32, 0")
    for t in range(2):
        for b in range(2): a(f"v_add_f32 {D[4*t+b]}, {D[4*t+b]}, {D[4*t+2+b]}")
    for b in range(2): a(f"v_permlane16_swap_b32 {D[b]}, {D[4+b]}")
    for b in range(2): a(f"v_add_f32 {D[b]}, {D[b]}, {D[4+b]}")
    for b in range(2): a(f"v_mul_f32 {D[b]}, s{14+b}, {D[b]}")
    publish_local(D[0], D[1])
    stamp(10)
    a(f"s_cmp_ge_u32 {sI}, 10\ns_cbranch_scc1 L_w_spare")
    gather2(3, pre=(lambda: fo_reads(range(n1,16))) if n1<16 else None)
    ca=A.alloc(64,4); cv=V.alloc(36,4)
    a(f"""v_cvt_pk_bf16_f32 {Dq[0]}, {Dq[0]}, {Dq[1]}
    v_cvt_pk_bf16_f32 {Dq[1]}, {Dq[2]}, {Dq[3]}
    ds_write_b64 {vTw}, {Dq[0:2]}
    s_waitcnt lgkmcnt(0)
    s_barrier""")
    AH=6
    for ks in range(16+AH):
        if ks<16: a(f"ds_read_b128 {ca.sub(4*ks,4)}, {vTrr} offset:{64*ks}")
        k2=ks-AH
        if k2>=0:
            a(f"s_waitcnt lgkmcnt({min(AH,15-k2)})")
            a(f"v_mfma_f32_16x16x32_bf16 {Do}, {ca.sub(4*k2,4)}, {fo.sub(4*k2,4)}, {Do}")
    a(f"""s_mov_b32 {sT[0]}, 8192
    v_cvt_pk_bf16_f32 {t0}, {Do[0]}, {Do[1]}
    v_and_or_b32 {t0}, {t0}, {vMK}, {vTGL}
    buffer_store_dword {t0}, {vE3}, {sWS}, 0 offen sc1
    buffer_store_dword {t0}, {vE3}, {sWS}, {sT[0]} offen sc1""")
    publish_global()
    a("s_branch L_w_done\nL_w_spare:")
    a(f"""s_cmp_lg_u32 {sI}, 15
    s_cbranch_scc1 L_w_red
    s_cmp_lg_u32 {sW}, 0
    s_cbranch_scc1 L_w_ag2
    s_mov_b32 {sCnt}, 12
    s_lshl_b32 {sT[0]}, {sX}, 7
    s_add_u32 {sT[0]}, {sT[0]}, {FL3}
    v_lshlrev_b32 {t0}, 10, {vL}
    L_w_ag0:
    buffer_load_dword {vJ}, {vFa}, {sWS}, 0 offen sc1
    s_sub_u32 {sCnt}, {sCnt}, 1
    s_cbranch_scc1 L_w_ag1
    s_waitcnt vmcnt(0)
    v_cmp_ne_u32 vcc, {sE}, {vJ}
    s_cbranch_vccnz L_w_ag0
    L_w_ag1:
    s_mov_b64 exec, 0xffff
    buffer_store_dword {vE}, {t0}, {sWS}, {sT[0]} offen sc1
    L_w_ag2:
    s_barrier""")
    publish_global()
    a("s_branch L_w_done\nL_w_red:")
    publish_global()
    a(f"s_cmp_lg_u32 {sW}, 0\ns_cbranch_scc1 L_w_done")
    srd(sRD,22,2560,False); srd(sRD,22,0,True)
    pr=cv[0:28]; idm=cv[28:32]; vRa=cv[32]; vOut=cv[33]; vF4=cv[34]
    a(f"""s_mul_i32 {sT[3]}, {sX}, 5
    s_add_u32 {sT[3]}, {sT[3]}, {sI}
    s_sub_u32 {sT[3]}, {sT[3]}, 10
    v_lshrrev_b32 {t1}, 2, {vN}
    v_lshlrev_b32 {t1}, 11, {t1}
    v_lshl_add_u32 {t1}, {vG}, 14, {t1}
    v_and_b32 {t2}, 3, {vL}
    v_lshl_add_u32 {t1}, {t2}, 4, {t1}
    s_cmp_ge_u32 {sX}, 4
    s_cselect_b32 {sT[0]}, 20, 0
    s_sub_u32 {sT[0]}, {sT[3]}, {sT[0]}
    s_lshl_b32 {sT[0]}, {sT[0]}, 6
    s_add_u32 {sT[0]}, {sT[0]}, {sSd}
    s_add_u32 {sT[0]}, {sT[0]}, {E4}
    v_add_u32 {vRa}, {sT[0]}, {t1}
    v_and_b32 {t2}, 1, {vN}
    v_lshlrev_b32 {t1}, 4, {t2}
    v_mov_b32 {t0}, 0x3f80
    v_lshlrev_b32 {t1}, {t1}, {t0}
    v_lshrrev_b32 {t0}, 1, {vN}""")
    for k in range(4): a(f"v_cmp_eq_u32 vcc, {k}, {t0}\nv_cndmask_b32 {idm[k]}, 0, {t1}, vcc")
    a(f"""v_bfe_u32 {t1}, {vN}, 1, 1
    v_lshlrev_b32 {t1}, 4, {t1}
    v_and_b32 {t0}, 1, {vG}
    v_lshl_or_b32 {t1}, {t0}, 3, {t1}
    s_lshl_b32 {sT[0]}, {sT[3]}, 5
    v_add_u32 {t1}, {sT[0]}, {t1}
    v_mul_u32_u24 {t0}, 1280, {t2}
    v_add_u32 {vOut}, {t1}, {t0}
    v_and_b32 {t0}, 7, {vL}
    s_lshl_b32 {sT[0]}, {sX}, 10
    s_add_u32 {sT[0]}, {sT[0]}, {FL4}
    s_add_u32 {sT[0]}, {sT[0]}, {sSd}
    v_lshl_add_u32 {vF4}, {t0}, 7, {sT[0]}""")
    for ii in range(1,7): a(f"s_mov_b32 s{4+ii}, {ii*65536}")
    for k in range(4): a(f"v_mov_b32 {pr[24+k]}, 0")
    a(f"v_not_b32 {vJ}, {sE}")
    flag_poll(vF4, vJ, None)
    stamp(2)
    if o['d4']: a(f"s_sleep {o['d4']}")
    L=poll_begin()
    seq=[6,0,1,2,3,4,5]
    for ii in seq:
        if ii==6: a("s_mov_b32 exec_hi, 0xfffff")
        a(f"buffer_load_dwordx4 {pr.sub(4*ii,4)}, {vRa}, {sWS}, {'s%d'%(4+ii) if ii else 0} offen sc1")
        if ii==6: a("s_mov_b32 exec_hi, -1")
    poll_count()
    a(f"v_mov_b32 {acc}, 0\ns_mov_b32 exec_hi, 0xfffff")
    for q,ii in enumerate(seq):
        a(f"s_waitcnt vmcnt({6-q})")
        clean4(acc, pr.sub(4*ii,4), False)
        if ii==6: a("s_mov_b32 exec_hi, -1")
        a(f"v_mfma_f32_16x16x32_bf16 {Dq}, {idm}, {pr.sub(4*ii,4)}, {Dq if q else 0}")
    poll_end(L, acc)
    for r in (8,4):
        for k in range(4): a(f"v_add_f32_dpp {Dq[k]}, {Dq[k]}, {Dq[k]} row_ror:{r} row_mask:0xf bank_mask:0xf")
    a(f"""s_mov_b64 exec, 0xf000f
    v_cvt_pk_bf16_f32 {Dq[0]}, {Dq[0]}, {Dq[1]}
    v_cvt_pk_bf16_f32 {Dq[1]}, {Dq[2]}, {Dq[3]}
    buffer_store_dwordx2 {Dq[0:2]}, {vOut}, {sRD}, 0 offen
    s_cmp_lg_u32 {sT[3]}, 0
    s_cbranch_scc1 L_w_done
    s_mov_b64 exec, 1
    buffer_store_dword {vE}, off, {sWS}, 0 sc1""")
    rend('WB')
    a("L_w_done:")
    stamp(11)
    amp('W')
    dump_ts()
    a("s_endpgm")
    vhiW, ahiW = V.hi, A.hi
    S.release(sm)

    a0=len(a.l)
    V = Regs('v', 6, 256); A = Regs('a', 0, 256)
    sA=S.alloc(); sHH=S.alloc(); sM0=S.alloc(); sFA=S.alloc()
    sCK=R('s',16,2)
    srd(sRA, 6, 8388608, False); srd(sRB, 8, 5242880, False); srd(sRC, 10, 4194304, False)
    vCk=V.alloc(4); t0=V.alloc(); t1=V.alloc(); t2=V.alloc(); vJ=V.alloc(); vHp=V.alloc()
    a(f"""s_lshl_b32 {sA}, {sX}, 4
    s_add_u32 {sA}, {sA}, {sI}
    s_sub_u32 {sA}, {sA}, 16
    s_and_b32 {sHH}, {sI}, 1
    v_lshrrev_b32 {t0}, 3, {vL}
    v_and_b32 {t1}, 7, {vL}
    v_lshlrev_b32 {t1}, 7, {t1}
    v_lshl_or_b32 {vHp}, {t0}, 13, {t1}
    v_lshlrev_b32 {t0}, 1, {vG}
    v_xor_b32 {t0}, {t0}, {vN}
    v_lshlrev_b32 {t0}, 4, {t0}
    v_lshl_or_b32 {vCk[0]}, {vG}, 10, {t0}""")
    for v in range(1,4): a(f"v_xor_b32 {vCk[v]}, {4096*v + 16*(8*(v&1)+(v>>1))}, {vCk[0]}")
    nq,nu=o['nq'],o['nu']
    a(f"""s_and_b32 {sT[0]}, {sI}, 3
    s_mul_i32 {sT[0]}, {sT[0]}, 160
    s_bfe_u32 {sT[1]}, {sI}, 0x20002
    s_lshl_b32 {sT[1]}, {sT[1]}, 3
    s_add_u32 {sT[0]}, {sT[0]}, {sT[1]}
    s_lshl_b32 {sT[1]}, {sW}, 5
    s_add_u32 {sT[0]}, {sT[0]}, {sT[1]}
    s_add_u32 {sT[0]}, {sT[0]}, {160-32*nq}
    s_lshl_b32 {sT[0]}, {sT[0]}, 13
    s_lshl_b32 {sT[2]}, {sX}, 10
    s_add_u32 {sT[0]}, {sT[0]}, {sT[2]}
    s_and_b32 {sT[1]}, {sI}, 15
    s_lshl_b32 {sT[1]}, {sT[1]}, 2
    s_add_u32 {sT[1]}, {sT[1]}, {sW}
    s_add_u32 {sT[1]}, {sT[1]}, {4-nu-nq}
    s_lshl_b32 {sT[1]}, {sT[1]}, 16
    s_add_u32 {sT[1]}, {sT[1]}, {sT[2]}
    s_lshr_b32 {sT[2]}, {sA}, 1
    s_lshl_b32 {sT[2]}, {sT[2]}, 17
    s_lshl_b32 {sT[3]}, {sW}, 15
    s_add_u32 {sT[2]}, {sT[2]}, {sT[3]}
    s_lshl_b32 {sT[3]}, {sHH}, 14
    s_lshl_b32 {sM0}, {sW}, 13
    s_waitcnt lgkmcnt(0)""")
    srd(sRB,8,0,True); srd(sRC,10,0,True); srd(sRA,6,0,True)
    if o.get('fronts'): stamp(4)
    assert nq<=4
    if nq+nu:
        if nq:
            a(f"s_cmp_ge_u32 {sW}, {nq}\ns_cbranch_scc1 L_a_h0\nbuffer_load_dword {vJ}, {vHp}, {sRB}, {sT[0]} offen\ns_branch L_a_h1\nL_a_h0:")
        if nq+nu<4: a(f"s_cmp_ge_u32 {sW}, {nq+nu}\ns_cbranch_scc1 L_a_h1")
        if nq<4: a(f"buffer_load_dword {vJ}, {vHp}, {sRC}, {sT[1]} offen")
        a("L_a_h1:")
        if nq+nu>4:
            a(f"s_add_u32 {sT[1]}, {sT[1]}, {4<<16}")
            if nq+nu<8: a(f"s_cmp_ge_u32 {sW}, {nq+nu-4}\ns_cbranch_scc1 L_a_h2")
            a(f"buffer_load_dword {vJ}, {vHp}, {sRC}, {sT[1]} offen\nL_a_h2:")
    a(f"s_or_b32 {sCK[0]}, {sT[2]}, {sT[3]}\ns_xor_b32 {sCK[1]}, {sCK[0]}, 0x4000")
    order=ORD[o['order']]
    dyn = any(g_[0] in 'ab' for g_ in order)
    sDy=R('s',0,2)
    if dyn: a(f"s_lshl_b32 {sDy[0]}, {sHH}, 12\ns_add_u32 {sDy[0]}, {sDy[0]}, {sM0}\ns_xor_b32 {sDy[1]}, {sDy[0]}, 0x1000\ns_mov_b32 {sT[3]}, {sT[2]}")
    def dma_group(g_):
        jq=int(g_[1])
        if g_[0] in 'os':
            tt='os'.index(g_[0]); a(f"s_add_u32 {sT[0]}, {sCK[tt]}, {256*jq}"); base,off=sM0,4096*tt
        else:
            ab='ab'.index(g_[0]); a(f"s_add_u32 {sT[0]}, {sT[3]}, {256*jq+16384*ab}"); base,off=sDy[ab],0
        for v in range(4):
            a(f"s_add_u32 m0, {base}, {CK+32768*jq+off+1024*v}")
            a(f"buffer_load_dwordx4 {vCk[v]}, {sRA}, {sT[0]} offen lds")
    ePos=order.index('E'); early=order[:ePos]; late=order[ePos+1:]
    blk=lambda g_: ({'o':0,'s':1,'a':0,'b':1}[g_[0]], int(g_[1]))
    assert all(g_[0] in 'os' for g_ in late)
    npre0 = 2 if nq+nu<=1 else (1 if nq+nu<=3 else 0)
    for g_ in early[:npre0]: dma_group(g_)
    srd(sWS,26,0,True)
    if o['P'] is None:
        a(f"""s_or_b32 {sT[1]}, s2, 8
        s_cmp_lg_u32 {sT[1]}, 249
        s_cbranch_scc1 L_a_norace
        s_cmp_lg_u32 {sW}, 2
        s_cbranch_scc1 L_a_norace
        s_lshl_b32 {sT[1]}, {sHH}, 13
        s_add_u32 {sT[1]}, {sT[1]}, {PRB}
        s_add_u32 s8, {sHH}, 1
        s_mov_b32 s9, 0""")
        for q in range(o['nrace']+1): a(f"s_load_dword {sJ}, s[26:27], {sT[1]} glc\ns_waitcnt lgkmcnt(0)")
        a("s_atomic_cmpswap s[8:9], s[24:25], 0 glc\nL_a_norace:")
    after_kernarg()
    a("s_branch L_roleA")
    pro=a.l[a0:]; del a.l[a0:]; a.l[splice:splice]=pro
    a("L_roleA:")
    for r,p,nb in ((sRB,18,2211840),(sRC,20,2211840),(sRD,22,2560),(sRE,14,5242880)):
        srd(r,p,nb,False); srd(r,p,0,True)
    if o['fpre']==1:
        cnt=(16-o['n1'])*5; assert 0<cnt<64
        a(f"""s_and_b32 {sT[1]}, {sI}, 15
        s_lshl_b32 {sT[1]}, {sT[1]}, 2
        s_add_u32 {sT[1]}, {sT[1]}, {sW}
        s_mul_i32 {sT[1]}, {sT[1]}, {cnt*128}
        s_mul_i32 {sT[2]}, {sX}, {512*1280}
        s_add_u32 {sT[1]}, {sT[1]}, {sT[2]}
        s_add_u32 {sT[1]}, {sT[1]}, {o['n1']*32*1280}
        v_lshl_add_u32 {vHp}, {vL}, 7, {sT[1]}""")
    vQk=V.alloc(8); vQb=V.alloc(4); vPv=V.alloc(4); vQw=V.alloc(4); vE1=V.alloc(); vL16=V.alloc(); vPw=V.alloc(); vMw=V.alloc(); vPr=V.alloc(); vMm=V.alloc(); vSo=V.alloc()
    one=V.alloc(4,4); sF2=R('s',4,1); sSt=R('s',5,1); sOo=R('s',6,1); sSd=R('s',19,1)
    a(f"""v_and_b32 {t0}, 7, {vN}
    v_lshrrev_b32 {t1}, 3, {vN}
    v_lshl_or_b32 {t0}, {t0}, 1, {t1}
    v_lshlrev_b32 {t1}, 2, {vG}
    v_xor_b32 {t0}, {t0}, {t1}
    v_lshlrev_b32 {t0}, 4, {t0}
    v_lshl_or_b32 {t0}, {vN}, 8, {t0}""")
    for s in range(4):
        a(f"v_xor_b32 {t1}, {16*s}, {t0}\nv_add_u32 {vQk[s]}, {sM0}, {t1}\nv_add_u32 {vQk[4+s]}, 0x10000, {vQk[s]}\nv_add_u32 {vQb[s]}, {QA}, {t1}")
    a(f"""v_lshrrev_b32 {t0}, 2, {vL}
    v_and_b32 {t1}, 7, {t0}
    v_lshrrev_b32 {t2}, 3, {t0}
    v_lshl_or_b32 {t1}, {t1}, 1, {t2}
    v_bfe_u32 {t2}, {vN}, 1, 1
    s_lshl_b32 {sT[1]}, {sW}, 2
    v_or_b32 {t2}, {sT[1]}, {t2}
    v_xor_b32 {t1}, {t1}, {t2}
    v_lshlrev_b32 {t1}, 4, {t1}
    v_lshl_or_b32 {t0}, {t0}, 8, {t1}
    v_and_b32 {t2}, 1, {vN}
    v_lshl_or_b32 {vPv[0]}, {t2}, 3, {t0}
    v_xor_b32 {vPv[1]}, 32, {vPv[0]}
    v_add_u32 {vPv[2]}, 0x10000, {vPv[0]}
    v_add_u32 {vPv[3]}, 0x10000, {vPv[1]}""")
    a(f"""s_and_b32 {sT[1]}, {sW}, 1
    s_lshl_b32 {sT[1]}, {sT[1]}, 3
    s_lshr_b32 {sT[2]}, {sW}, 1
    s_or_b32 {sT[1]}, {sT[1]}, {sT[2]}
    v_xor_b32 {t0}, {sT[1]}, {vN}
    v_lshlrev_b32 {t0}, 4, {t0}
    v_lshl_or_b32 {t0}, {vG}, 12, {t0}
    s_lshl_b32 {sT[1]}, {sW}, 10
    s_add_u32 {sT[1]}, {sT[1]}, {QA}
    v_add_u32 {vQw[0]}, {sT[1]}, {t0}""")
    for ii in range(1,4): a(f"v_xor_b32 {vQw[ii]}, {ii*(256+32)}, {vQw[0]}")
    a(f"""v_lshlrev_b32 {vL16}, 4, {vL}
    s_lshr_b32 {sSd}, {sX}, 2
    s_lshl_b32 {sSd}, {sSd}, 13
    s_mul_i32 {sT[2]}, {sSd}, 9
    s_lshl_b32 {sT[1]}, {sHH}, 15
    s_add_u32 {sT[1]}, {sT[1]}, {sT[2]}
    s_and_b32 {sT[2]}, {sW}, 2
    s_add_u32 {sT[2]}, {sT[2]}, {sW}
    s_lshl_b32 {sT[2]}, {sT[2]}, 12
    s_add_u32 {sT[1]}, {sT[1]}, {sT[2]}
    s_add_u32 {sT[1]}, {sT[1]}, {E1}
    v_add_u32 {vE1}, {sT[1]}, {vL16}
    s_lshr_b32 {sOo}, {sA}, 1
    s_lshl_b32 {sOo}, {sOo}, 15
    s_add_u32 {sOo}, {sOo}, {sT[2]}
    s_lshl_b32 {sT[2]}, {sHH}, 13
    s_add_u32 {sOo}, {sOo}, {sT[2]}
    s_xor_b32 {sOo}, {sOo}, {OO+8192*o['OF']}
    s_lshl_b32 {sF2}, {sX}, 5
    s_add_u32 {sF2}, {sF2}, {sI}
    s_lshl_b32 {sF2}, {sF2}, 2
    s_add_u32 {sF2}, {sF2}, {FLA-64}
    s_lshr_b32 {sSt}, {sA}, 1
    s_and_b32 {sT[1]}, {sSt}, 48
    s_add_u32 {sSt}, {sSt}, {sT[1]}
    s_lshl_b32 {sSt}, {sSt}, 9
    s_add_u32 {sSt}, {sSt}, {sT[2]}
    s_add_u32 {sSt}, {sSt}, {STAT}
    v_lshrrev_b32 {t0}, 2, {vN}
    v_and_b32 {t1}, 3, {vN}
    v_lshlrev_b32 {t1}, 4, {t1}
    v_lshl_or_b32 {vSo}, {t0}, 7, {t1}
    v_lshl_or_b32 {vSo}, {vG}, 6, {vSo}
    v_add_u32 {vPr}, {PX}, {vL16}
    s_lshl_b32 {sT[1]}, {sW}, 10
    v_add_u32 {vPw}, {sT[1]}, {vPr}
    s_lshl_b32 {sT[1]}, {sW}, 2
    s_add_u32 {sT[1]}, {sT[1]}, {MX-PX}
    v_add_u32 {vMw}, {sT[1]}, {vPr}
    v_lshlrev_b32 {vMm}, 2, {vN}
    v_add_u32 {vMm}, {MM}, {vMm}
    v_bfrev_b32 {t0}, 1
    ds_write_b32 {vMm}, {t0}""")
    for k in range(4): a(f"v_mov_b32 {one[k]}, 0x3f803f80")
    a(f"""s_bfe_u32 {sT[1]}, {sI}, 0x20002
    s_lshl_b32 {sT[1]}, {sT[1]}, 3
    s_add_u32 {sT[1]}, {sT[1]}, {sX}
    s_lshl_b32 {sFA}, {sT[1]}, 2
    s_and_b32 {sT[1]}, {sI}, 3
    s_add_u32 {sFA}, {sFA}, {sT[1]}""")
    sFp=R('s',7,1); vH2=V.alloc()
    if o['thr']==4:
        a(f"""s_lshl_b32 {sFp}, {sT[1]}, 2
        s_add_u32 {sFp}, {sFp}, {sW}
        s_mul_i32 {sFp}, {sFp}, {40*3456}
        s_lshl_b32 {sT[2]}, {sFA}, 5
        s_add_u32 {sFp}, {sFp}, {sT[2]}
        s_cmp_ge_u32 {sFA}, 108
        s_cselect_b32 {sFp}, 0x40000000, {sFp}
        v_mul_u32_u24 {vH2}, 3456, {vL}""")
    if o['fpre']==2:
        a(f"""s_mul_i32 {sFp}, {sT[1]}, {160*3456}
        s_lshl_b32 {sT[2]}, {sFA}, 5
        s_add_u32 {sFp}, {sFp}, {sT[2]}
        s_mul_i32 {sT[1]}, {sFA}, 20480
        s_add_u32 {sT[1]}, {sT[1]}, {sM0}
        s_cmp_eq_u32 {sW}, 3
        s_cselect_b32 {sT[1]}, {sFp}, {sT[1]}
        s_cselect_b32 {sT[2]}, 27, 1
        s_lshl_b32 {sT[2]}, {sT[2]}, 7
        v_mul_u32_u24 {vHp}, {sT[2]}, {vL}
        v_add_u32 {vHp}, {sT[1]}, {vHp}""")
    if npre0<1: dma_group(early[0])
    a("s_waitcnt lgkmcnt(0)")
    vTGL,vMK,vE=mk_tags(V, vL)
    warm('AA',3); rbegin('AA')
    if npre0<2: dma_group(early[1])
    if o.get('fronts'): stamp(5)
    pl=V.alloc(28,4); acc=V.alloc(); qb=V.alloc(64,4); fk=A.alloc(128,4); fp=A.alloc(128,4); Sx=V.alloc(8,4)
    def e1_loads():
        for ii in range(4): a(f"buffer_load_dwordx4 {pl.sub(4*ii,4)}, {vE1}, {sWS}, 0 offen offset:{1024*ii} sc1")
    def fk_read(tt,jq,s): return f"ds_read_b128 {fk.sub(64*tt+16*jq+4*s,4)}, {vQk[4*(jq>>1)+s]} offset:{32768*(jq&1)+4096*tt}"
    def fp_read(tt,jq,ks,t2_): return f"ds_read_b64_tr_b16 {fp.sub(32*ks+8*jq+4*t2_+2*tt,2)}, {vPv[2*(jq>>1)+t2_]} offset:{32768*(jq&1)+8192*ks+4096*tt}"
    late1=late[:2]; late2=late[2:]
    n1=4*len(late1)
    items=early+['E']+late1
    def issue(it):
        if it=='E': e1_loads()
        else: dma_group(it)
    issue(items[2])
    held=[]
    for k,g_ in enumerate(early):
        a(f"s_waitcnt vmcnt({4*min(2,len(items)-1-k)})")
        if o.get('fronts') and k in (0,1,2,3,5): stamp({0:6,1:7,2:8,3:9,5:10}[k])
        if k+3<len(items) and items[k+3]=='E':
            get_P("L_a_P")
            a(f"v_xor_b32 {vE1}, {sP}, {vE1}\ns_xor_b32 {sOo}, {sOo}, {sP}\ns_xor_b32 {sSt}, {sSt}, {sP}\ns_xor_b32 {sSd}, {sSd}, {sP}")
        if k+3<len(items): issue(items[k+3])
        if k+5<len(items) and items[k+5]=='E': get_P_issue()
        held.append(g_)
        if g_[0]=='a': continue
        a("s_barrier")
        for h_ in held:
            for s in range(4): a(fk_read(*blk(h_),s))
            for ks in range(4):
                for t2_ in range(2): a(fp_read(*blk(h_),ks,t2_))
        held=[]
    stamp(2)
    if o.get('fronts'): off.update((4,5,6,7,8,9,10))
    def e1_stage(extra):
        for ii in range(4):
            a(f"s_waitcnt vmcnt({extra+3-ii})")
            clean4(acc, pl.sub(4*ii,4), ii==0)
            a(f"ds_write_b128 {vQw[ii]}, {pl.sub(4*ii,4)}")
        a(f"v_and_b32 {acc}, 0x10001, {acc}\nv_cmp_ne_u32 vcc, 0, {acc}")
    a(f"s_mov_b32 {sCnt}, {o['cap']}")
    e1_stage(n1)
    a("s_cbranch_vccz L_a_e1ok\nL_a_e1retry:")
    e1_loads(); poll_count(); e1_stage(0)
    a("s_cbranch_vccnz L_a_e1retry\nL_a_e1ok:")
    a("s_waitcnt lgkmcnt(0)\ns_barrier")
    stamp(3)
    nfp = 1 if o['fpre'] else 0
    def fpre():
        if not o['fpre']: return
        assert not late2
        if o['fpre']==1:
            a(f"s_bfm_b64 exec, {(16-o['n1'])*5}, 0\nbuffer_load_dword {vJ}, {vHp}, {sRE}, 0 offen")
            if o['thr']==4 and o['f2']: a(f"s_bfm_b64 exec, {o['f2']}, 0\nbuffer_load_dword {vJ}, {vH2}, {sRB}, {sFp} offen")
            a("s_mov_b64 exec, -1")
        else:
            a(f"""s_cmp_eq_u32 {sW}, 3
            s_cbranch_scc1 L_a_fp3
            s_cmp_eq_u32 {sW}, 2
            s_cselect_b32 exec_hi, 0, -1
            buffer_load_dword {vJ}, {vHp}, {sRC}, 0 offen
            s_mov_b32 exec_hi, -1
            s_branch L_a_fp4
            L_a_fp3:
            buffer_load_dword {vJ}, {vHp}, {sRB}, 0 offen
            L_a_fp4:""")
    jorder=[]
    for g_ in early+late:
        if blk(g_)[1] not in jorder: jorder.append(blk(g_)[1])
    qreads=[(jq,s) for jq in jorder for s in range(4)]
    started=[False,False]
    def qk_mm(tt,jq,s):
        a(f"v_mfma_f32_16x16x32_bf16 {Sx.sub(4*tt,4)}, {fk.sub(64*tt+16*jq+4*s,4)}, {qb.sub(16*jq+4*s,4)}, {Sx.sub(4*tt,4) if started[tt] else 0}")
        started[tt]=True
    eb=[blk(g_) for g_ in early]
    AH=8
    pend=list(late2)
    for k in range(16+AH):
        if k<16:
            jq,s=qreads[k]; a(f"ds_read_b128 {qb.sub(16*jq+4*s,4)}, {vQb[s]} offset:{4096*jq}")
        if k==AH-1:
            for g_ in pend: dma_group(g_)
        k2=k-AH
        if k==o['fap']:
            assert not late
            a(f"s_cmp_lg_u32 {sW}, 0\ns_cbranch_scc1 L_a_fa\ns_mov_b64 exec, 1\nbuffer_store_dword {vE}, off, {sWS}, {sF2}\ns_mov_b64 exec, -1\nL_a_fa:")
        if k==max(o['fap']+2, o.get('fpp',0)) or (k==23 and o['fap']>21): fpre()
        if k2>=0:
            jq,s=qreads[k2]
            tts=[tt for tt in range(2) if (tt,jq) in eb]
            if tts:
                if k2%2==0: a(f"s_waitcnt lgkmcnt({max(0,min(AH-1,14-k2))})")
                for tt in tts: qk_mm(tt,jq,s)
    prev=None
    for k,g_ in enumerate(late):
        a(f"s_waitcnt vmcnt({4*(len(late)-1-k)+nfp})")
        for s in range(4): a(fk_read(*blk(g_),s))
        if prev:
            a("s_waitcnt lgkmcnt(4)")
            for s in range(4): qk_mm(*prev,s)
        prev=blk(g_)
    if prev:
        for s in range(4):
            a(f"s_waitcnt lgkmcnt({3-s})"); qk_mm(*prev,s)
    stamp(4)
    mx=V.alloc(); mi=V.alloc(); Pw=V.alloc(4,4); Pf=V.alloc(16,4); m4=V.alloc(4,4); Dv=V.alloc(32,4); stv=V.alloc(4,4); vM=V.alloc()
    fin=prev[0] if prev else 1
    e0,e1_=Sx.sub(4*(1-fin),4),Sx.sub(4*fin,4)
    a(f"""v_max3_f32 {mx}, {e0[0]}, {e0[1]}, {e0[2]}
    v_max3_f32 {mx}, {mx}, {e0[3]}, {e1_[0]}
    v_max3_f32 {t0}, {e1_[1]}, {e1_[2]}, {e1_[3]}
    v_max_f32 {mx}, {mx}, {t0}
    v_ceil_f32 {mx}, {mx}""")
    for k in range(8):
        a(f"v_sub_f32 {Sx[k]}, {Sx[k]}, {mx}")
        if k==0: a(f"v_cvt_i32_f32 {mi}, {mx}")
    a(f"ds_max_i32 {vMm}, {mi}\nds_write_b32 {vMw}, {mi}")
    for k in range(8): a(f"v_exp_f32 {Sx[k]}, {Sx[k]}")
    for k in range(4): a(f"v_cvt_pk_bf16_f32 {Pw[k]}, {Sx[2*k]}, {Sx[2*k+1]}")
    a(f"ds_write_b128 {vPw}, {Pw}")
    a("s_waitcnt lgkmcnt(0)\ns_barrier")
    a(f"ds_read_b32 {vM}, {vMm}\nds_read_b128 {m4}, {vPr} offset:{MX-PX}")
    for ks in range(4): a(f"ds_read_b128 {Pf.sub(4*ks,4)}, {vPr} offset:{1024*ks}")
    lr=[fp_read(*blk(g_),ks,t2_) for g_ in late for ks in range(4) for t2_ in range(2)]
    npre=min(8,len(lr))
    for x_ in lr[:npre]: a(x_)
    lr=lr[npre:]
    stamp(5)
    def scale(ks):
        return [f"v_sub_u32 {m4[ks]}, {vM}, {m4[ks]}", f"v_min_u32 {m4[ks]}, 0xff, {m4[ks]}", f"v_mul_u32_u24 {m4[ks]}, 0x800080, {m4[ks]}"] + \
               [f"v_pk_sub_u16 {Pf[4*ks+k]}, {Pf[4*ks+k]}, {m4[ks]} clamp" for k in range(4)]
    a(f"s_waitcnt lgkmcnt({4+npre})")
    for x_ in scale(0)[:3]: a(x_)
    a(f"s_waitcnt lgkmcnt({npre})")
    for x_ in scale(0)[3:]+scale(1)[:2]: a(x_)
    lateJ=sorted({blk(g_)[1] for g_ in late}); earlyJ=[j_ for j_ in range(4) if j_ not in lateJ]
    def pv(t,ks): return f"v_mfma_f32_16x16x32_bf16 {Dv.sub(4*t,4)}, {Pf.sub(4*ks,4)}, {fp.sub(32*ks+4*t,4)}, {Dv.sub(4*t,4) if ks else 0}"
    def lm(ks): return f"v_mfma_f32_16x16x32_bf16 {stv}, {one}, {Pf.sub(4*ks,4)}, {stv if ks else 0}"
    def pack(u): return [f"v_cvt_pk_bf16_f32 {pl[4*r+u]}, {Dv[8*u+r]}, {Dv[8*u+4+r]}" for r in range(4)] + [f"v_and_or_b32 {pl[4*r+u]}, {pl[4*r+u]}, {vMK}, {sTG[u]}" for r in range(4)]
    stfill=[f"v_mov_b32 {stv[2]}, {vM}", f"v_mov_b32 {stv[0]}, {sE}", f"v_mov_b32 {stv[3]}, {sE}",
          f"s_cmp_lg_u32 {sW}, 0\ns_cbranch_scc1 L_a_st\ns_bfm_b64 exec, 32, 0\nbuffer_store_dwordx4 {stv}, {vSo}, {sWS}, {sSt} offen sc1\ns_mov_b64 exec, -1\nL_a_st:"]
    assert len(earlyJ)>=2
    head=[pv(2*j_+t2_,0) for j_ in earlyJ for t2_ in range(2)]
    rest=[(j_,ks,t2_) for j_ in earlyJ for ks in (1,2,3) for t2_ in range(2)]+[(j_,ks,t2_) for j_ in lateJ for ks in range(4) for t2_ in range(2)]
    if len(earlyJ)<4:
        pull=[r_ for r_ in rest if r_[1]==1 and r_[0] in earlyJ][:8-len(head)]
        head+=[pv(2*j_+t2_,ks) for j_,ks,t2_ in pull]; rest=[r_ for r_ in rest if r_ not in pull]
    mm=[(lm(0),None)]+[(m_,None) for m_ in head[0:3]]+[(lm(1),None)]+[(m_,None) for m_ in head[3:5]]+[(lm(2),None)]+[(m_,None) for m_ in head[5:8]]+[(lm(3),'st')]
    mm+=[(pv(2*j_+t2_,ks), j_ if (ks==3 and t2_==1) else None) for j_,ks,t2_ in rest]
    must=scale(1)[2:]+scale(2)+scale(3)
    due={}
    firstlate=len(mm)-8*len(lateJ)
    lastj=(earlyJ+lateJ)[-1]
    for q,(m_,ev) in enumerate(mm):
        if lateJ and q==firstlate:
            for x_ in lr: a(x_)
            lr=[]; a("s_waitcnt lgkmcnt(0)")
        a(m_)
        if ev=='st': due[q+(3 if o['stp']=='early' else int(o['stp']))]=stfill
        elif ev is not None and ev!=lastj: due.setdefault(q+3,[]); due[q+3]=due[q+3]+pack(ev)
        must+=due.pop(q,[])
        n_=0
        for _ in range(2):
            if must: a(must.pop(0)); n_+=1
            elif lr: a(lr.pop(0)); n_+=1
        if n_<2 and q<len(mm)-1: a(f"s_nop {1-n_}")
    assert not due
    stamp(6)
    for x_ in must: a(x_)
    pk=pack(lastj)
    for r in range(4):
        a(pk[r]); a(pk[4+r])
        a(f"buffer_store_dwordx4 {pl.sub(4*r,4)}, {vL16}, {sWS}, {sOo} offen offset:{1024*r} sc1")
    stamp(7)
    a(f"s_cmp_gt_u32 {sFA}, 108\ns_cbranch_scc1 L_a_done")
    A.release(0)
    f1=A.alloc(80,4); f2=A.alloc(24,4); hf=A.alloc(80,4)
    vW1=vQk[0]; vR1=vQk[1]; vR2=vQk[2]; vGa=vQk[3]; vHw=vQk[4]; vHr=vQk[5]; vSw=vQk[6]; vSr=vQk[7]; vE4=vQb[0]; vF3=vQb[1]; vRa=vQb[2]; vOut=vQb[3]; vHq=vPv[0]
    a(f"""v_lshrrev_b32 {t0}, 1, {vL}
    v_and_b32 {t1}, 19, {t0}
    v_bfe_u32 {t2}, {t0}, 2, 1
    v_lshl_or_b32 {t1}, {t2}, 3, {t1}
    v_bfe_u32 {t2}, {t0}, 3, 1
    v_lshl_or_b32 {t1}, {t2}, 2, {t1}
    v_mul_u32_u24 {t1}, 3456, {t1}
    v_and_b32 {t2}, 1, {vL}
    v_lshl_add_u32 {vW1}, {t2}, 4, {t1}
    s_mul_i32 {sT[0]}, {sW}, {32*3456}
    s_lshl_b32 {sT[1]}, {sFA}, 5
    s_add_u32 {sT[0]}, {sT[0]}, {sT[1]}
    s_lshl_b32 {sM0}, {sW}, 10
    s_mul_i32 {sT[1]}, {sFA}, 20480
    s_add_u32 {sT[1]}, {sT[1]}, {sM0}
    s_and_b32 {sT[2]}, {sI}, 3
    s_barrier""")
    def w1_dma():
        a(f"""s_lshl_b32 s4, {sT[2]}, 12
        s_add_u32 m0, s4, {sM0}
        s_mul_i32 s4, {sT[2]}, {128*3456}
        s_add_u32 s4, s4, {sT[0]}
        buffer_load_dwordx4 {vW1}, {sRB}, s4 offen lds
        s_add_u32 {sT[2]}, {sT[2]}, 1
        s_cmp_eq_u32 {sT[2]}, 5
        s_cselect_b32 {sT[2]}, 0, {sT[2]}""")
    assert W1==0
    if o.get('dff'): a(f"s_sleep {o['dff']}")
    if o['fpre']==2:
        a(f"""s_mul_i32 s4, {sW}, {24*3456}
        s_add_u32 s4, s4, {sFp}
        s_add_u32 s4, s4, {64*3456}
        v_mul_u32_u24 {t0}, 3456, {vL}
        s_bfm_b64 exec, 24, 0
        buffer_load_dword {vJ}, {t0}, {sRB}, s4 offen
        s_mov_b64 exec, -1""")
    elif o['thr']==4:
        a(f"""s_bfm_b64 exec, {40-o['f2']}, {o['f2']}
        buffer_load_dword {vJ}, {vH2}, {sRB}, {sFp} offen
        s_mov_b64 exec, -1""")
    elif o['thr']==3:
        assert o['hf']==1
        a(f"""s_lshl_b32 s4, {sT[2]}, 2
        s_add_u32 s4, s4, {sW}
        s_mul_i32 s4, s4, {16*3456}
        s_lshl_b32 s5, {sFA}, 5
        s_add_u32 s4, s4, s5
        v_mul_u32_u24 {t0}, 3456, {vL}
        s_mov_b64 exec, 0xffff
        buffer_load_dword {vJ}, {t0}, {sRB}, s4 offen
        s_mov_b64 exec, -1
        s_mov_b32 {sT[2]}, 2""")
    elif o['thr']:
        assert o['hf']==1
        a(f"""s_mul_i32 s4, {sFA}, 20480
        s_mul_i32 s5, {sW}, {28*128}
        s_add_u32 s5, s5, s4
        v_lshlrev_b32 {t0}, 7, {vL}
        s_bfm_b64 exec, 28, 0
        buffer_load_dword {vJ}, {t0}, {sRC}, s5 offen
        s_mul_i32 s5, {sW}, {24*128}
        s_add_u32 s5, s5, s4
        s_add_u32 s5, s5, {112*128}
        s_cmp_ge_u32 {sW}, 2
        s_waitcnt vmcnt(0)
        s_cbranch_scc1 L_a_th1
        s_bfm_b64 exec, 24, 0
        buffer_load_dword {vJ}, {t0}, {sRC}, s5 offen
        s_branch L_a_th2
        L_a_th1:
        s_bfm_b64 exec, 32, 0
        s_lshl_b32 s4, {sT[2]}, 1
        s_sub_u32 s4, s4, 2
        s_mul_i32 s4, s4, {32*3456}
        s_add_u32 s4, s4, {sT[0]}
        v_mul_u32_u24 {t0}, 3456, {vL}
        buffer_load_dword {vJ}, {t0}, {sRB}, s4 offen
        L_a_th2:
        s_mov_b64 exec, -1
        s_mov_b32 {sT[2]}, 2""")
        if o['thr']==2: a("s_waitcnt vmcnt(0)")
    else: w1_dma()
    for v in range(5):
        a(f"s_add_u32 m0, {sM0}, {W2+4096*v}")
        if v: a(f"s_add_u32 {sT[1]}, {sT[1]}, 4096")
        a(f"buffer_load_dwordx4 {vL16}, {sRC}, {sT[1]} offen lds")
    nw1 = 5 if (o['fpre']==2 or o['thr']) else 4
    for v in range(nw1): w1_dma()
    rend('AA')
    sel=mk_sel(V, vN, t0, t1)
    sMT=R('s',4,12); sEx=R('s',16,2)
    a(f"""v_and_b32 {t0}, 1, {vG}
    v_lshlrev_b32 {t0}, 7, {t0}
    v_lshrrev_b32 {t1}, 1, {vG}
    v_lshl_or_b32 {t0}, {t1}, 9, {t0}
    v_lshl_or_b32 {vR1}, {vN}, 3, {t0}
    s_cmp_eq_u32 {sW}, 3
    s_cselect_b32 {sT[0]}, 32, 96
    s_cselect_b32 {sT[2]}, 4, 12
    s_mul_i32 {sT[1]}, {sW}, 384
    v_lshrrev_b32 {t0}, 2, {vL}
    v_mul_u32_u24 {t0}, 1280, {t0}
    v_and_b32 {t1}, 3, {vN}
    v_mul_u32_u24 {t1}, {sT[0]}, {t1}
    v_add3_u32 {vR2}, {t0}, {t1}, {sT[1]}
    v_mul_u32_u24 {t1}, {sT[0]}, {vG}
    v_add_lshl_u32 {t1}, {t1}, {sT[1]}, 1
    v_lshl_add_u32 {t1}, {vN}, 4, {t1}
    v_mov_b32 {vHq}, {t1}
    v_cmp_le_u32 vcc, 1280, {t1}
    v_add_u32 {t0}, {8192-1280}, {t1}
    v_cndmask_b32 {t1}, {t1}, {t0}, vcc
    v_xor_b32 {t1}, {sP}, {t1}
    s_and_b32 {sT[1]}, {sFA}, 0x7c
    s_add_u32 {sT[1]}, {sT[1]}, {sFA}
    s_lshl_b32 {sT[1]}, {sT[1]}, 11
    s_add_u32 {sT[1]}, {sT[1]}, {E4}
    v_add_u32 {vE4}, {sT[1]}, {t1}
    v_cmp_gt_u32 {sEx}, {sT[2]}, {vN}
    v_and_b32 {t0}, 2, {vG}
    v_add_lshl_u32 {t0}, {t0}, {vG}, 12
    v_lshl_add_u32 {t0}, {vN}, 4, {t0}
    s_lshl_b32 {sT[1]}, {sW}, 8
    s_add_u32 {sT[1]}, {sT[1]}, {E3}
    s_and_b32 {sT[3]}, {sX}, 3
    s_lshl_b32 {sT[3]}, {sT[3]}, 16
    s_add_u32 {sT[3]}, {sT[3]}, {sSd}
    s_add_u32 {sT[1]}, {sT[1]}, {sT[3]}
    v_add_u32 {vGa}, {sT[1]}, {t0}
    v_and_b32 {t0}, 1, {vG}
    v_mul_u32_u24 {t1}, 1312, {t0}
    v_lshrrev_b32 {t2}, 1, {vG}
    v_lshl_add_u32 {t1}, {t2}, 9, {t1}
    v_lshl_add_u32 {t1}, {vN}, 3, {t1}
    s_lshl_b32 {sT[1]}, {sW}, 7
    s_add_u32 {sT[1]}, {sT[1]}, {HB}
    v_add_u32 {vHw}, {sT[1]}, {t1}
    v_lshlrev_b32 {t0}, 6, {t0}
    v_lshl_or_b32 {t0}, {t2}, 3, {t0}
    s_lshl_b32 {sT[1]}, {sW}, 4
    s_add_u32 {sT[1]}, {sT[1]}, {ST}
    v_add_u32 {vSw}, {sT[1]}, {t0}
    v_and_b32 {t0}, 1, {vN}
    v_mul_u32_u24 {t1}, 1312, {t0}
    v_lshl_add_u32 {t1}, {vG}, 4, {t1}
    v_add_u32 {vHr}, {HB}, {t1}
    v_lshlrev_b32 {t0}, 6, {t0}
    v_add_u32 {vSr}, {ST}, {t0}
    v_lshrrev_b32 {t0}, 1, {vN}""")
    for T in range(6): a(f"v_cmp_eq_u32 {sMT.sub(2*T,2)}, {T}, {t0}")
    sF4=R('s',18,1)
    a(f"""v_and_b32 {t1}, 7, {vL}
    s_lshl_b32 {sT[0]}, {sX}, 10
    s_add_u32 {sT[0]}, {sT[0]}, {FL3}
    s_add_u32 {sT[0]}, {sT[0]}, {sSd}
    v_lshl_add_u32 {vF3}, {t1}, 7, {sT[0]}
    s_lshl_b32 {sT[0]}, {sX}, 7
    s_add_u32 {sT[0]}, {sT[0]}, {FL4}
    v_lshl_add_u32 {vRa}, {vN}, 10, {sT[0]}
    s_lshl_b32 {sF4}, {sI}, 2
    s_add_u32 {sF4}, {sF4}, {sW}""")
    def f4_store():
        a(f"""s_cmp_lg_u32 {sF4}, {16*4+3}
        s_cbranch_scc1 L_a_f4
        s_mov_b64 exec, 0xffff
        buffer_store_dword {vE}, {vRa}, {sWS}, 0 offen sc1
        s_mov_b64 exec, -1
        L_a_f4:""")
    cs=m4; D1=stv; Da=Sx[0:4]; Db=Sx[4:8]; hb=qb[0:16]; dl=qb[16:20]; hq=qb[20:22]
    a(f"s_mov_b32 {sOff}, 32768")
    for k in range(4): a(f"v_mov_b32 {Db[k]}, 0")
    warm('AF',3); rbegin('AF')
    a(f"s_waitcnt vmcnt({nw1})\ns_barrier")
    for T in range(6):
        for t in range(2): a(f"ds_read_b64_tr_b16 {f2.sub(4*T+2*t,2)}, {vR2} offset:{W2+16*T+8*t}")
    a("s_waitcnt vmcnt(0)\ns_barrier")
    def f1_prep():
        for ks in range(20):
            for e in range(2): a(f"ds_read_b64_tr_b16 {f1.sub(4*ks+2*e,2)}, {vR1} offset:{W1+1024*ks+256*e}")
            if ks>=5:
                a(f"s_waitcnt lgkmcnt(10)\nv_mfma_f32_16x16x32_bf16 {cs}, {f1.sub(4*(ks-5),4)}, {one}, {cs if ks>5 else 0}")
        a("s_waitcnt lgkmcnt(0)")
        for ks in range(15,20): a(f"v_mfma_f32_16x16x32_bf16 {cs}, {f1.sub(4*ks,4)}, {one}, {cs}")
    stamp(8)
    flag_wait(vF3, vJ, "L_a_f3", 1, o['d3'], f1_prep)
    a(f"s_cmp_lt_u32 {sW}, 2\ns_cbranch_scc1 L_e3_six")
    for variant in (4,6):
        if variant==6: a("L_e3_six:")
        L=poll_begin()
        seq=list(range(4)) if variant==4 else [4,5,0,1,2,3]
        for ii in seq:
            a(f"buffer_load_dwordx4 {pl.sub(4*ii,4)}, {vGa}, {sWS}, {sOff if ii&1 else 0} offen offset:{1024*(ii>>1)} sc1")
        poll_count()
        for q,ii in enumerate(seq):
            a(f"s_waitcnt vmcnt({variant-1-q})")
            Dd = Da if ii<4 else Db
            clean4(acc, pl.sub(4*ii,4), q==0)
            a(f"v_mfma_f32_16x16x32_bf16 {Dd}, {sel.sub(4*((ii>>1)&1),4)}, {pl.sub(4*ii,4)}, {Dd if ii not in (0,4) else 0}")
            if variant==6 and ii==1:
                a(f"""v_cvt_pk_bf16_f32 {Pf[2]}, {Db[0]}, {Db[1]}
                v_cvt_pk_bf16_f32 {Pf[3]}, {Db[2]}, {Db[3]}
                s_bfm_b64 exec, 32, 0
                ds_write_b64 {vHw}, {Pf[2:4]} offset:1024
                s_mov_b64 exec, -1""")
        poll_end(L, acc)
        if variant==4: a("s_branch L_e3_done")
    a("L_e3_done:")
    stamp(9)
    s1=Pf[4]; s2=Pf[5]
    a(f"""v_add_f32 {s1}, {Db[0]}, {Db[1]}
    v_mul_f32 {s2}, {Db[0]}, {Db[0]}
    v_fmac_f32 {s2}, {Db[1]}, {Db[1]}""")
    for k in range(2,4): a(f"v_add_f32 {s1}, {s1}, {Db[k]}\nv_fmac_f32 {s2}, {Db[k]}, {Db[k]}")
    a(f"""v_cvt_pk_bf16_f32 {Pf[0]}, {Da[0]}, {Da[1]}
    v_cvt_pk_bf16_f32 {Pf[1]}, {Da[2]}, {Da[3]}
    ds_write_b64 {vHw}, {Pf[0:2]}""")
    for k in range(4): a(f"v_add_f32 {s1}, {s1}, {Da[k]}\nv_fmac_f32 {s2}, {Da[k]}, {Da[k]}")
    a(f"s_cmp_eq_u32 {sFA}, 108\ns_waitcnt lgkmcnt(0)\ns_barrier\ns_cbranch_scc1 L_a_h")
    AH=8
    for ks in range(AH): a(f"ds_read_b128 {hf.sub(4*ks,4)}, {vHr} offset:{64*ks}")
    if o['fl4']=='b1': f4_store()
    for r in (8,4,2,1):
        for s_ in (s1,s2): a(f"v_add_f32_dpp {s_}, {s_}, {s_} row_ror:{r} row_mask:0xf bank_mask:0xf")
    a(f"ds_write_b64 {vSw}, {Pf[4:6]}")
    mu=hb[0]; rs=hb[1]
    def mm1(k2): a(f"v_mfma_f32_16x16x32_bf16 {D1}, {f1.sub(4*k2,4)}, {hf.sub(4*k2,4)}, {D1 if k2 else 0}")
    a("s_waitcnt lgkmcnt(1)")
    for k2 in range(8):
        mm1(k2)
        if k2<6: a(f"ds_read_b128 {hf.sub(4*(8+2*k2),4)}, {vHr} offset:{64*(8+2*k2)}\nds_read_b128 {hf.sub(4*(9+2*k2),4)}, {vHr} offset:{64*(9+2*k2)}")
        if k2==6: a("s_waitcnt lgkmcnt(8)\ns_barrier")
        if k2==7:
            for k in range(4): a(f"ds_read_b128 {hb.sub(4*k,4)}, {vSr} offset:{16*k}")
    for k2 in range(8,12): mm1(k2)
    if o['fl4']=='b2': f4_store()
    a("s_waitcnt lgkmcnt(0)")
    extra=[]
    for k in (0,2,4,6): extra.append(f"v_pk_add_f32 {hb.sub(k,2)}, {hb.sub(k,2)}, {hb.sub(8+k,2)}")
    extra += [f"v_pk_add_f32 {hb[0:2]}, {hb[0:2]}, {hb[4:6]}", f"v_pk_add_f32 {hb[2:4]}, {hb[2:4]}, {hb[6:8]}", f"v_pk_add_f32 {hb[0:2]}, {hb[0:2]}, {hb[2:4]}",
              f"v_mul_f32 {mu}, {f32(1/640)}, {mu}", f"v_mul_f32 {rs}, {f32(1/640)}, {rs}", f"v_fma_f32 {rs}, -{mu}, {mu}, {rs}", f"v_max_f32 {rs}, 0, {rs}",
              f"v_add_f32 {rs}, {f32(1e-5)}, {rs}", f"v_rsq_f32 {rs}, {rs}"]
    for k2 in range(12,20):
        mm1(k2)
        for _ in range(2):
            if extra: a(extra.pop(0))
    assert not extra
    if o['fl4']=='f1': f4_store()
    a(f"v_mul_f32 {hb[2]}, {f32(-math.log2(math.e))}, {rs}")
    for k in range(4): a(f"v_fma_f32 {D1[k]}, -{mu}, {cs[k]}, {D1[k]}")
    for k in range(4): a(f"v_mul_f32 {dl[k]}, {hb[2]}, {D1[k]}")
    for k in range(4): a(f"v_exp_f32 {dl[k]}, {dl[k]}")
    for k in range(4): a(f"v_add_f32 {dl[k]}, 1.0, {dl[k]}")
    for k in range(4): a(f"v_rcp_f32 {dl[k]}, {dl[k]}\nv_mul_f32 {D1[k]}, {D1[k]}, {rs}")
    for k in range(4): a(f"v_mul_f32 {D1[k]}, {D1[k]}, {dl[k]}")
    a(f"v_cvt_pk_bf16_f32 {t0}, {D1[0]}, {D1[1]}\nv_cvt_pk_bf16_f32 {t1}, {D1[2]}, {D1[3]}")
    for T in range(7):
        if T<6: a(f"v_cndmask_b32 {Pf[2*T]}, 0, {t0}, {sMT.sub(2*T,2)}\nv_cndmask_b32 {Pf[2*T+1]}, 0, {t1}, {sMT.sub(2*T,2)}")
        if T>=1:
            for t in range(2):
                a(f"v_mfma_f32_16x16x16_bf16 {Dv.sub(4*t,4)}, {f2.sub(4*(T-1)+2*t,2)}, {Pf.sub(2*(T-1),2)}, {Dv.sub(4*t,4) if T>1 else 0}")
    a(f"s_mov_b64 exec, {sEx}")
    for u in range(4): a(f"v_cvt_pk_bf16_f32 {stv[u]}, {Dv[2*u]}, {Dv[2*u+1]}\nv_and_or_b32 {stv[u]}, {stv[u]}, {vMK}, {sTG[u]}")
    a(f"buffer_store_dwordx4 {stv}, {vE4}, {sWS}, 0 offen sc1\ns_mov_b64 exec, -1")
    stamp(10)
    a("s_branch L_a_done\nL_a_h:")
    a(f"""v_lshrrev_b32 {t1}, 5, {vHq}
    v_bfe_u32 {t0}, {vHq}, 4, 1
    v_mul_u32_u24 {t0}, 1312, {t0}
    v_lshl_add_u32 {t0}, {t1}, 4, {t0}
    ds_read_b128 {stv}, {t0} offset:{HB}
    s_mov_b64 exec, {sEx}
    s_waitcnt lgkmcnt(0)""")
    for u in range(4): a(f"v_and_or_b32 {stv[u]}, {stv[u]}, {vMK}, {sTG[u]}")
    a(f"buffer_store_dwordx4 {stv}, {vE4}, {sWS}, 0 offen sc1")
    rend('AF')
    a("L_a_done:")
    stamp(11)
    amp('A')
    dump_ts()
    a("L_end:\ns_endpgm\nL_codeend:")
    vhi=max(vhiW,V.hi); ahi=max(ahiW,A.hi)
    acc_off=(vhi+3)//4*4
    body='\n'.join(add_warm_stubs(a.lines()))+'\n'
    hdr=f"""; Fused pre-LN MLA-decode attention + SiLU FFN, one persistent launch (256 workgroups, one per CU).
; @launch grid=(256,1,1) block=(256,1,1) lds={LDS_BYTES}
.amdgcn_target "amdgcn-amd-amdhsa--gfx950"
.text
.p2align 12
.fill 832, 4, 0xbf810000
.globl {NAME}_kernel
.p2align 8
.type {NAME}_kernel,@function
{NAME}_kernel:
"""
    tail=f""".section .rodata,"a"
.p2align 6
.amdhsa_kernel {NAME}_kernel
  .amdhsa_next_free_vgpr {acc_off+ahi}
  .amdhsa_next_free_sgpr 102
  .amdhsa_accum_offset {acc_off}
  .amdhsa_group_segment_fixed_size 0
  .amdhsa_kernarg_size 96
  .amdhsa_user_sgpr_count 2
  .amdhsa_user_sgpr_kernarg_segment_ptr 1
  .amdhsa_system_sgpr_workgroup_id_x 1
.end_amdhsa_kernel
"""
    return hdr+body+tail
if __name__=="__main__":
    open("k.s","w").write(gen())
    open("k_ts.s","w").write(gen(dict(ts=True)))
```

```python
import sys; sys.path.insert(0,'.')
from mb import *
import gen as G
for a_ in sys.argv[1:]:
    for ts in (True, False):
        opt = eval("dict(" + a_ + ")"); opt['ts'] = ts
        co = build(G.gen(opt), G.NAME+'_kernel', 12, 'kk')
        p = cl.address_register_problem(co, G.NAME+'_kernel')
        if p: print(a_, p)
print("checked")
```
